```python
import torch

def _softmax(x, axis=-1):
    return torch.softmax(x, dim=axis)
def _gelu(x):
    return torch.nn.functional.gelu(x, approximate="tanh")
def _silu(x):
    return torch.nn.functional.silu(x)
def _sigmoid(x):
    return torch.sigmoid(x)
def _layernorm(x, axis=-1, eps=1e-5):
    m = x.mean(dim=axis, keepdim=True)
    v = x.var(dim=axis, keepdim=True, unbiased=False)
    return (x - m) / torch.sqrt(v + eps)
def _scatter_add(tgt, idx, src, axis=0):
    return tgt.clone().index_add_(axis, idx, src)
def _segment_sum(src, seg, n):
    out = torch.zeros((n,) + src.shape[1:], dtype=src.dtype)
    return out.index_add_(0, seg, src)
def _pad(x, pw):
    flat = tuple(v for pair in reversed(pw) for v in pair)
    return torch.nn.functional.pad(x, flat)

kernel_name = 'parallel_sum__ssm_conv_h3__glu_gated_reglu__prompt'

def setup_inputs():

    _w = (lambda a: (lambda t: t.to(torch.bfloat16) if t.is_floating_point() else t)(torch.as_tensor(a)))
    def _A_setup():
        B, S, D = 1, 2048, 512
        ks = 4
        return {
            "q": _w((lambda *s: torch.randn(*s, dtype=torch.bfloat16) * 0.05)(B, S, D)),
            "k": _w((lambda *s: torch.randn(*s, dtype=torch.bfloat16) * 0.2)(B, S, D)),
            "v": _w((lambda *s: torch.randn(*s, dtype=torch.bfloat16) * 0.2)(B, S, D)),
            "shift_k": _w((lambda *s: torch.randn(*s, dtype=torch.bfloat16) * 0.2)(D, ks) * 0.5),
            "ssm_k": _w((lambda *s: torch.randn(*s, dtype=torch.bfloat16) * 0.4)(D, S) * (1.0 / S ** 0.5)),
            "ssm_D": _w((lambda *s: torch.randn(*s, dtype=torch.bfloat16) * 0.2)(D)),
        }
    _A_in = _A_setup()

    def _B_setup():
        B, S, D, F = 1, 2048, 512, 1792
        return {
            "x": _w((lambda *s: torch.randn(*s, dtype=torch.bfloat16) * 0.05)(B, S, D)),
            "W_gate": _w((lambda *s: torch.randn(*s, dtype=torch.bfloat16) * 0.2)(D, F) * (2.0 / D) ** 0.5),
            "W_up": _w((lambda *s: torch.randn(*s, dtype=torch.bfloat16) * 0.2)(D, F) * (2.0 / D) ** 0.5),
            "W_down": _w((lambda *s: torch.randn(*s, dtype=torch.bfloat16) * 0.2)(F, D) * (1.0 / F) ** 0.5),
        }
    _B_in = _B_setup()

    return {
        "A_q": _A_in["q"],
        "A_k": _A_in["k"],
        "A_v": _A_in["v"],
        "A_shift_k": _A_in["shift_k"],
        "A_ssm_k": _A_in["ssm_k"],
        "A_ssm_D": _A_in["ssm_D"],
        "B_x": _B_in["x"],
        "B_W_gate": _B_in["W_gate"],
        "B_W_up": _B_in["W_up"],
        "B_W_down": _B_in["W_down"],
    }

def reference(A_q, A_k, A_v, A_shift_k, A_ssm_k, A_ssm_D, B_x, B_W_gate, B_W_up, B_W_down):
    def _A_ref(q, k, v, shift_k, ssm_k, ssm_D):
        B, S, D = q.shape
        ks = shift_k.shape[-1]
        k_pad = _pad(k, ((0, 0), (ks - 1, 0), (0, 0)))
        k_shift = torch.zeros_like(k)
        for t in range(ks):
            k_shift = k_shift + k_pad[:, t:t + S, :] * shift_k[:, ks - 1 - t][None, None, :]
        kv = k_shift * v
        L = 2 * S
        kv_pad = _pad(kv, ((0, 0), (0, S), (0, 0)))
        kf_pad = _pad(ssm_k, ((0, 0), (0, S)))
        kv_f = (lambda x, axes=(-2,-1): torch.fft.rfft2(x.float(), dim=axes))(kv_pad[:, None, :, :], axes=(1, 2))
        kf_f = (lambda x, axes=(-2,-1): torch.fft.rfft2(x.float(), dim=axes))(kf_pad[:, None, :], axes=(1, 2))
        kf_f = (lambda x, *d: x.permute(*d))(kf_f, 1, 2, 0)
        y_f = kv_f * kf_f[None, :, :, :]
        y = (lambda x, s, axes=(-2,-1): torch.fft.irfft2(x, s=s, dim=axes).to(torch.bfloat16))(y_f, (1, L), axes=(1, 2))[:, 0, :S, :]
        y = y + kv * ssm_D[None, None, :]
        return q * y

    def _B_ref(x, W_gate, W_up, W_down):
        gate = torch.einsum("bsd,df->bsf", x, W_gate)
        up = torch.einsum("bsd,df->bsf", x, W_up)
        gate = gate * (lambda x, dt: x.to(dt))(gate > 0, gate.dtype)
        h = gate * up
        return torch.einsum("bsf,fd->bsd", h, W_down)

    x = A_q
    xn = _layernorm(x, axis=-1)
    return x + _A_ref(xn, A_k, A_v, A_shift_k, A_ssm_k, A_ssm_D) + _B_ref(xn, B_W_gate, B_W_up, B_W_down)
```

```python
import re

RE_RANGE = re.compile(r'^([vas])\[(\d+):(\d+)\]$')
RE_ONE = re.compile(r'^([vas])(\d+)$')

def regs_of(tok):
    tok = tok.strip()
    neg = tok.lstrip('-')
    if neg.startswith('abs(') : neg = neg[4:-1]
    if neg.startswith('|'): neg = neg.strip('|')
    m = RE_RANGE.match(neg)
    if m: return [(m.group(1), i) for i in range(int(m.group(2)), int(m.group(3)) + 1)]
    m = RE_ONE.match(neg)
    if m: return [(m.group(1), int(m.group(2)))]
    if neg == 'vcc': return [('vcc', 0)]
    if neg == 'exec': return [('exec', 0)]
    if neg == 'm0': return [('m0', 0)]
    return []

TRANS = ('v_exp_f32', 'v_log_f32', 'v_rcp_f32', 'v_rsq_f32', 'v_sqrt_f32', 'v_sin_f32', 'v_cos_f32')

class Ins:
    __slots__ = ('text', 'op', 'kind', 'dst', 'src', 'tag', 'srcA', 'srcB', 'srcC', 'passes', 'dpp', 'lds', 'wide', 'meta')
    def __init__(self, text, tag=None):
        self.text = text; self.tag = tag; self.meta = None
        t = text.split(';')[0].strip()
        self.dst = []; self.src = []; self.srcA = self.srcB = self.srcC = []; self.passes = 0
        self.dpp = False; self.lds = False; self.wide = False
        if t.endswith(':') or t.startswith('.') or not t:
            self.op = t; self.kind = 'label' if t.endswith(':') else 'dir'; return
        parts = t.split(None, 1)
        op = parts[0]; self.op = op
        rest = parts[1] if len(parts) > 1 else ''
        ops = [o.strip() for o in rest.split(',')] if rest else []
        mods = ''
        if ops:
            last = ops[-1].split(None, 1)
            ops[-1] = last[0]
            mods = last[1] if len(last) > 1 else ''
        R = [regs_of(o) for o in ops]
        if op.startswith('v_mfma'):
            self.kind = 'mfma'
            self.dst = R[0]; self.srcA = R[1]; self.srcB = R[2]; self.srcC = R[3]
            self.src = R[1] + R[2] + R[3]
            self.passes = 8 if '32x32x16' in op else 4
        elif op.startswith('v_'):
            self.kind = 'valu'
            self.dpp = ('quad_perm' in rest or 'row_' in rest or 'wave_' in rest or op.endswith('_dpp'))
            if op.startswith('v_cmp'):
                self.dst = R[0]; self.src = sum(R[1:], [])
            elif '_co_' in op:
                self.dst = R[0] + R[1]; self.src = sum(R[2:], [])
            elif 'permlane' in op and 'swap' in op:
                self.dst = R[0] + R[1]; self.src = R[0] + R[1]
            elif op.startswith(('v_fmac', 'v_dot2c', 'v_pk_fmac', 'v_mac')):
                self.dst = R[0]; self.src = sum(R, [])
            elif op == 'v_nop':
                pass
            else:
                self.dst = R[0]; self.src = sum(R[1:], [])
                if self.dpp: self.src = self.src + R[0]
        elif op.startswith('ds_'):
            self.kind = 'ds'
            if op.startswith(('ds_read', 'ds_bpermute', 'ds_permute', 'ds_swizzle')):
                self.dst = R[0]; self.src = sum(R[1:], [])
            else:
                self.src = sum(R, [])
        elif op.startswith(('buffer_', 'global_')):
            self.kind = 'vmem'
            allm = ' ' + mods + ' '
            if op in ('buffer_wbl2', 'buffer_inv'):
                pass
            elif ' lds ' in allm:
                self.lds = True; self.src = sum(R, []) + [('m0', 0)]
            elif 'load' in op:
                self.dst = R[0]; self.src = sum(R[1:], [])
            elif 'atomic' in op:
                self.src = sum(R, [])
                if ' sc0 ' in allm: self.dst = R[0]
            else:
                self.src = sum(R, [])
                self.wide = op.endswith(('x3', 'x4'))
                self.meta = R[0] if op.startswith('buffer_') else R[1]
        elif op.startswith(('s_load', 's_memtime', 's_memrealtime', 's_buffer_load')):
            self.kind = 'smem'; self.dst = R[0]; self.src = sum(R[1:], [])
        elif op == 's_waitcnt':
            self.kind = 'wait'
        elif op == 's_nop':
            self.kind = 'nop'
        elif op.startswith(('s_branch', 's_cbranch')):
            self.kind = 'branch'
        elif op in ('s_barrier', 's_endpgm', 's_sleep', 's_setprio'):
            self.kind = 'sctl'
        elif op.startswith('s_'):
            self.kind = 'salu'
            if op.startswith('s_cmp') or op.startswith('s_bitcmp'):
                self.src = sum(R, [])
            elif 'saveexec' in op:
                self.dst = R[0] + [('exec', 0)]; self.src = sum(R[1:], []) + [('exec', 0)]
            else:
                self.dst = R[0]; self.src = sum(R[1:], [])
        else:
            raise ValueError("unknown instr: " + text)
    def states(self):
        if self.kind == 'nop': return int(self.text.split()[1]) + 1
        if self.kind in ('label', 'dir'): return 0
        return 1

class WaitTag:
    def __init__(self, vm=None, lgkm0=False, vm0=False): self.vm = vm; self.lgkm0 = lgkm0; self.vm0 = vm0
class State:
    def __init__(self, act, name): self.act = act; self.name = name

def I(text, tag=None): return Ins(text, tag)

def parse_wait(text):
    vm = re.search(r'vmcnt\((\d+)\)', text); lg = re.search(r'lgkmcnt\((\d+)\)', text)
    return (int(vm.group(1)) if vm else None, int(lg.group(1)) if lg else None)

def finalize(stream, verbose=False):
    out = []
    vm = []
    lg = []
    saved = {}
    nwait = nnop = 0
    def emit_wait(v, l):
        nonlocal vm, lg, nwait
        parts = []
        if v is not None and v < len(vm):
            v = min(v, 63); parts.append(f"vmcnt({v})"); vm = vm[len(vm) - v:] if v else []
        if l is not None and l < len(lg):
            if any(s for _, s in lg): l = 0
            l = min(l, 15); parts.append(f"lgkmcnt({l})"); lg = lg[len(lg) - l:] if l else []
        if parts:
            out.append(Ins("s_waitcnt " + " ".join(parts))); nwait += 1
    def need(lst, regs):
        last = -1
        for n, e in enumerate(lst):
            if e[0] & regs: last = n
        return None if last < 0 else len(lst) - 1 - last
    def hazard(ins):
        req = 0
        dist = 0
        src = set(ins.src); dst = set(ins.dst)
        for p in reversed(out):
            if dist > 24: break
            if p.kind in ('label',):
                pass
            n = 0
            pd = set(p.dst)
            if p.kind == 'valu':
                isdot = p.op.startswith('v_dot')
                vd = {r for r in pd if r[0] in 'va'}
                sd = {r for r in pd if r[0] in ('s', 'vcc')}
                if ins.kind == 'mfma' and vd & src: n = max(n, 3 if isdot else 2)
                if ins.kind == 'valu':
                    if isdot and (vd & (src | dst)):
                        if ins.op == p.op and not (vd & set(sum([regs_of(x) for x in opnds(ins)[1:3]], []))): pass
                        else: n = max(n, 3)
                    if ins.dpp and vd & src: n = max(n, 2)
                    if 'permlane' in ins.op and vd & src: n = max(n, 2)
                    if ins.op.startswith(('v_readfirstlane', 'v_readlane')) and vd & src: n = max(n, 1)
                    if p.op.startswith(TRANS) and not ins.op.startswith(TRANS) and vd & src: n = max(n, 1)
                    if sd & src: n = max(n, 4 if ins.op.startswith(('v_readlane', 'v_writelane')) else 2)
                    if ('sdwa' in p.text or 'op_sel' in p.text) and vd & (src | dst): n = max(n, 1)
                if ins.kind in ('ds', 'vmem') and isdot and vd & src: n = max(n, 3)
                if ins.kind == 'vmem' and sd & src: n = max(n, 5)
                if ins.kind in ('salu', 'branch') and sd & (src | ({('vcc', 0)} if 'vcc' in ins.op else set())): n = max(n, 2)
            elif p.kind == 'mfma':
                big = 12 if p.passes == 8 else 8
                if ins.kind == 'mfma':
                    if pd & set(ins.srcA + ins.srcB): n = max(n, big)
                    if pd & set(ins.srcC):
                        if not (p.dst == ins.srcC and p.passes == ins.passes): n = max(n, big - 2)
                    elif pd & dst: n = max(n, big)
                elif ins.kind in ('valu', 'ds', 'vmem'):
                    if pd & (src | dst): n = max(n, big)
                    if ins.kind == 'valu' and set(p.srcC) & dst: n = max(n, 7 if p.passes == 8 else 3)
            elif p.kind == 'salu':
                if ('m0', 0) in pd and ins.kind == 'vmem' and ins.lds: n = max(n, 1)
            elif p.kind == 'vmem':
                if p.wide and set(p.meta) & dst: n = max(n, 2)
            if n - dist > req: req = n - dist
            dist += p.states()
        return req
    def opnds(ins):
        t = ins.text.split(';')[0].strip().split(None, 1)
        return [o.strip().split()[0] for o in t[1].split(',')]
    for it in stream:
        if isinstance(it, str):
            for line in it.split('\n'):
                if line.strip(): _one(Ins(line), out, locals()) if False else None
            raise ValueError("raw str in stream: " + it)
        if isinstance(it, State):
            if it.act == 'save': saved[it.name] = (list(vm), list(lg))
            elif it.act == 'restore': vm, lg = list(saved[it.name][0]), list(saved[it.name][1])
            elif it.act == 'check':
                a = [e[1] for e in saved[it.name][0]]; b = [e[1] for e in vm]
                assert a == b and len(saved[it.name][1]) == len(lg) == 0, ("state mismatch", it.name, a, b, len(lg))
                vm = [(x[0] | y[0], x[1]) for x, y in zip(vm, saved[it.name][0])]
            continue
        if isinstance(it, WaitTag):
            v = None
            if it.vm0: v = 0
            elif it.vm is not None:
                tags = it.vm if isinstance(it.vm, (list, tuple, set)) else [it.vm]
                last = -1
                for n, e in enumerate(vm):
                    if e[1] in tags: last = n
                v = None if last < 0 else len(vm) - 1 - last
            emit_wait(v, 0 if it.lgkm0 else None)
            continue
        ins = it
        if ins.kind == 'wait':
            v, l = parse_wait(ins.text)
            emit_wait(v, l)
            continue
        if ins.kind not in ('label', 'dir'):
            regs = set(ins.src) | set(ins.dst)
            emit_wait(need(vm, regs), need(lg, regs))
            h = hazard(ins)
            while h > 0:
                k = min(h, 16); out.append(Ins(f"s_nop {k-1}")); h -= k; nnop += 1
        out.append(ins)
        if ins.kind == 'vmem':
            vm.append((set(ins.dst), ins.tag))
            assert len(vm) <= 63, "too many vmem in flight"
        elif ins.kind == 'ds':
            lg.append((set(ins.dst), False))
        elif ins.kind == 'smem':
            lg.append((set(ins.dst), True))
    if verbose: print(f"; finalize: {len(out)} instrs, {nwait} waits, {nnop} nops")
    return out

def weave(main, fillers):
    out = list(fillers.get(-1, []))
    for i, m in enumerate(main):
        out.append(m)
        out.extend(fillers.get(i, []))
    return out
```

```python
import sys
from asmlib import *

NAME = "parallel_sum__ssm_conv_h3__glu_gated_reglu__prompt"
PROF = "--prof" in sys.argv

WS_H  = 0x000000
WS_KV = 0x800000
WS_Y  = 0xA00000
WS_ST = 0xC00000
WS_KF = 0xC40000
WS_HF = 0xC41000
WS_YF = 0xC42000
WS_EP = 0xC43000
WS_PR = 0xC50000
WS_SIZE = 0xD00000
OOB = 0x7FFFFF00
RP = 24704
HT = 4 * RP
HP = 4512
UA = HT + 8 * HP
UP = 4224
KS_K = UA
YS = UA + 17408
LDS_SIZE = 163840
sB, sW, sRB, sFS, sTT, sDT, sROT = 2, 3, 4, 5, 6, 7, 8
sT0, sT1, sT2, sT3, sT4, sT5, sT6 = 9, 10, 11, 12, 13, 14, 15
sTAG, sD, sR, sXB, sWB, sHI = 16, 17, 18, 19, 20, 21
sCNT, sT7 = 22, 23
sWG, sWU, sDP, sEX = 24, 26, 28, 30
sWDB, sHB = 32, 33
def srd(n): return f"s[{n}:{n+3}]"
X_, K_, V_, SH_, SSM_, W_, WD_, OUT_, WS_, DBG_ = 44, 48, 52, 56, 60, 64, 68, 72, 76, 80
STP = list(range(84, 102, 2)) + [36, 38, 40, 42]

S = []
SLOW = []
def A(t, tag=None):
    for line in t.split('\n'):
        if line.strip(): S.append(Ins(line.strip(), tag))
def L(t, tag=None):
    return [Ins(line.strip(), tag) for line in t.split('\n') if line.strip()]
def vr(a, n=4): return f"v[{a}:{a+n-1}]"
def ar(a, n=4): return f"a[{a}:{a+n-1}]"
nstamp = 0
def stamp():
    global nstamp
    if PROF:
        A(f"s_memtime s[{STP[nstamp]}:{STP[nstamp]+1}]")
        nstamp += 1

npoll = 0
def poll_issue(vF, vAddr, soff):
    return L(f"buffer_load_dword v{vF}, v{vAddr}, {srd(WS_)}, {soff} offen sc1")
def poll_check(vF, vAddr, soff):
    global npoll
    n = npoll; npoll += 1
    o = L(f"v_cmp_ne_u32 vcc, s{sTAG}, v{vF}\ns_cbranch_vccnz L_slow{n}\nL_back{n}:")
    SLOW.extend(L(f"""L_slow{n}:
s_mov_b32 s{sCNT}, 0x40000
L_spin{n}:
s_sleep 2
buffer_load_dword v{vF}, v{vAddr}, {srd(WS_)}, {soff} offen sc1
s_waitcnt vmcnt(0)
v_cmp_ne_u32 vcc, s{sTAG}, v{vF}
s_sub_u32 s{sCNT}, s{sCNT}, 1
s_cbranch_scc1 L_back{n}
s_nop 1
s_cbranch_vccnz L_spin{n}
s_branch L_back{n}"""))
    return o

vL = 0
vXr = [1, 2, 3, 4]
vWo = [5, 6, 7, 8, 9, 10, 11]
vT = [12, 13]
vRs, vMr = 14, 15
vt = list(range(16, 32))
vE = 32
vL16 = 33
vFl = 34
vFa = 35
ACC = [48, 64, 80, 96, 112]
XR = 128
def acc(ti): return vr(ACC[ti], 16) if ti < 5 else ar(224 + 16 * (ti - 5), 16)

A(f"s_cmp_ge_u32 s{sB}, 256\ns_cbranch_scc1 L_end")
stamp()
for sr, off in [(K_, 8), (V_, 16), (X_, 0), (SH_, 24), (SSM_, 32), (WS_, 96), (sWG, 56), (sWU, 64), (sDP, 40), (WD_, 72), (OUT_, 80), (DBG_, 88)]:
    A(f"s_load_dwordx2 s[{sr}:{sr+1}], s[0:1], {off}")
A(f"v_lshrrev_b32 v1, 6, v0\nv_and_b32 v{vL}, 63, v0\nv_readfirstlane_b32 s{sW}, v1")
for sr, size in [(X_, 2097152), (K_, 2097152), (V_, 2097152), (SH_, 4096), (SSM_, 2097152), (W_, 1835008), (WD_, 1835008), (OUT_, 2097152), (WS_, WS_SIZE), (DBG_, 256)]:
    A(f"s_mov_b32 s{sr+2}, {size}\ns_mov_b32 s{sr+3}, 0x20000")
A(f"""s_lshr_b32 s{sT0}, s{sB}, 3
s_and_b32 s{sDT}, s{sT0}, 7
s_lshr_b32 s{sT0}, s{sB}, 6
s_and_b32 s{sT1}, s{sB}, 1
s_lshl_b32 s{sRB}, s{sT1}, 3
s_add_u32 s{sRB}, s{sRB}, s{sDT}
s_and_b32 s{sFS}, s{sB}, 6
s_lshl_b32 s{sFS}, s{sFS}, 1
s_add_u32 s{sFS}, s{sFS}, s{sT0}
s_lshl_b32 s{sTT}, s{sT1}, 4
s_add_u32 s{sTT}, s{sTT}, s{sFS}
s_lshl_b32 s{sROT}, s{sT0}, 1
s_add_u32 s{sROT}, s{sROT}, s{sDT}
s_and_b32 s{sROT}, s{sROT}, 7
s_mul_i32 s{sR}, s{sW}, {RP}
s_mov_b32 s{sHI}, 0xffff0000""")
vA8, vC8 = 48, 49
vKa, vKb, vKh = 50, 51, 52
vXg = [54, 55, 56, 57]
vSh = 58
A(f"""v_lshrrev_b32 v{vA8}, 3, v{vL}
v_and_b32 v{vC8}, 7, v{vL}
v_lshlrev_b32 v{vL16}, 4, v{vL}
s_add_u32 s{sT2}, s{sW}, 1
v_xor_b32 v{vKa}, s{sT2}, v{vC8}
v_lshlrev_b32 v{vKa}, 4, v{vKa}
v_lshl_add_u32 v{vKa}, v{vA8}, 10, v{vKa}
v_xor_b32 v{vKb}, 64, v{vKa}
s_lshl_b32 s{sT3}, s{sTT}, 16
s_lshl_b32 s{sT4}, s{sDT}, 7
s_add_u32 s{sT3}, s{sT3}, s{sT4}
s_sub_u32 s{sT4}, s{sT3}, 8192
v_lshlrev_b32 v{vKh}, 4, v{vC8}
v_lshl_add_u32 v{vKh}, v{vA8}, 10, v{vKh}
v_add_u32 v{vKh}, s{sT4}, v{vKh}
s_lshl_b32 s{sT4}, s{sW}, 13
s_add_u32 s{sT3}, s{sT3}, s{sT4}
s_add_u32 s{sT4}, s{sT3}, 32768""")
A(f"v_lshrrev_b32 v{vt[0]}, 4, v{vL}")
for rg in range(4):
    if rg & 1: A(f"v_xor_b32 v{vt[1]}, 4, v{vt[0]}\nv_xor_b32 v{vt[1]}, v{vt[1]}, v{vC8}")
    else:      A(f"v_xor_b32 v{vt[1]}, v{vt[0]}, v{vC8}")
    A(f"v_lshlrev_b32 v{vt[1]}, 4, v{vt[1]}\nv_lshl_add_u32 v{vXg[rg]}, v{vA8}, 10, v{vt[1]}")
    if rg: A(f"v_add_u32 v{vXg[rg]}, {7168*rg}, v{vXg[rg]}")
A(f"""s_lshl_b32 s{sXB}, s{sRB}, 17
s_lshl_b32 s{sT5}, s{sW}, 15
s_add_u32 s{sXB}, s{sXB}, s{sT5}
v_lshlrev_b32 v{vSh}, 4, v{vA8}
s_lshl_b32 s{sT5}, s{sDT}, 9
s_lshl_b32 s{sT6}, s{sW}, 7
s_add_u32 s{sT5}, s{sT5}, s{sT6}
s_lshl_b32 s{sT6}, s{sW}, 4
s_mov_b64 s[{sEX}:{sEX+1}], 0xffff
s_lshl_b64 s[{sEX}:{sEX+1}], s[{sEX}:{sEX+1}], s{sT6}
s_lshl_b32 s{sT6}, s{sT2}, 10
s_add_u32 s{sT6}, s{sT6}, {KS_K}""")
S.append(WaitTag(lgkm0=True))
A(f"""s_mov_b32 m0, {KS_K}
s_mov_b64 exec, s[{sEX}:{sEX+1}]
buffer_load_dwordx4 v{vKh}, {srd(K_)}, 0 offen lds
s_mov_b64 exec, -1
s_mov_b32 m0, s{sT6}
s_load_dword s{sD}, s[{sDP}:{sDP+1}], 0
buffer_load_dwordx4 v{vKa}, {srd(K_)}, s{sT3} offen lds
s_add_u32 m0, s{sT6}, 4096
s_nop 0
buffer_load_dwordx4 v{vKb}, {srd(K_)}, s{sT4} offen lds
s_add_u32 m0, s{sT6}, 8192
s_nop 0
buffer_load_dwordx4 v{vKa}, {srd(V_)}, s{sT3} offen lds
s_add_u32 m0, s{sT6}, 12288
s_nop 0
buffer_load_dwordx4 v{vKb}, {srd(V_)}, s{sT4} offen lds""".replace(f"s_load_dword s{sD}, s[{sDP}:{sDP+1}], 0\n", "s_nop 0\n"), tag="kv")
vSK = 60
A(f"buffer_load_dwordx4 {vr(vSK)}, v{vSh}, {srd(SH_)}, s{sT5} offen")
A(f"""s_lshr_b32 s{sT0}, s{sW}, 1
s_mul_i32 s{sT0}, s{sT0}, {4*HP - 4096}
s_lshl_b32 s{sT1}, s{sW}, 11
s_add_u32 s{sT0}, s{sT0}, s{sT1}
s_add_u32 s{sT7}, s{sT0}, {HT + 3*HP + 384}
s_mov_b32 m0, s{sT7}
s_lshl_b32 s{sT0}, s{sB}, 13
s_add_u32 s{sT0}, s{sT0}, s{sT1}""")
A(f"""buffer_load_dwordx4 v{vL16}, {srd(SSM_)}, s{sT0} offen lds
buffer_load_dwordx4 v{vL16}, {srd(SSM_)}, s{sT0} offen offset:1024 lds""", tag="kv")
A(f"v_mov_b32 v{vt[2]}, {WS_EP}\nbuffer_load_dword v{vE}, v{vt[2]}, {srd(WS_)}, 0 offen sc1")

def x_dma(bt):
    o = L(f"""s_add_u32 s{sT0}, s{sROT}, {bt}
s_and_b32 s{sT0}, s{sT0}, 7
s_lshl_b32 s{sT0}, s{sT0}, 7
s_add_u32 s{sT0}, s{sT0}, s{sXB}
s_add_u32 m0, s{sR}, {(bt % 6) * 4096}""")
    for rg in range(4):
        o += L(f"buffer_load_dwordx4 v{vXg[rg]}, {srd(X_)}, s{sT0} offen offset:{1024*rg} lds", tag=f"x{bt}")
    return o
for bt in range(6): S.extend(x_dma(bt))
A(f"""s_lshl_b32 s{sT0}, s{sB}, 2
s_add_u32 s{sDP}, s{sDP}, s{sT0}
s_addc_u32 s{sDP+1}, s{sDP+1}, 0
s_load_dword s{sD}, s[{sDP}:{sDP+1}], 0
s_bitcmp1_b32 s{sW}, 0
s_cselect_b32 s{W_}, s{sWU}, s{sWG}
s_cselect_b32 s{W_+1}, s{sWU+1}, s{sWG+1}
s_lshr_b32 s{sT0}, s{sW}, 1
s_mul_i32 s{sWB}, s{sT0}, {32*3584}
s_mul_i32 s{sT0}, s{sFS}, 224
s_add_u32 s{sWB}, s{sWB}, s{sT0}""")
for n in range(7):
    A(f"""v_add_u32 v{vt[0]}, {64*n}, v{vL}
v_mul_u32_u24 v{vt[1]}, 4682, v{vt[0]}
v_lshrrev_b32 v{vt[1]}, 16, v{vt[1]}
v_mul_u32_u24 v{vt[2]}, {3584 - 224}, v{vt[1]}
v_lshl_add_u32 v{vWo[n]}, v{vt[0]}, 4, v{vt[2]}""")
    if n & 3: A(f"v_subrev_u32 v{vWo[n]}, {1024*(n&3)}, v{vWo[n]}")
A(f"""v_and_b32 v{vt[0]}, 31, v{vL}
v_lshrrev_b32 v{vt[1]}, 5, v{vL}
v_bfe_u32 v{vt[2]}, v{vL}, 1, 3
v_xor_b32 v{vt[1]}, v{vt[1]}, v{vt[2]}
v_lshlrev_b32 v{vt[1]}, 4, v{vt[1]}
v_lshlrev_b32 v{vt[0]}, 7, v{vt[0]}
v_add_u32 v{vt[0]}, s{sR}, v{vt[0]}""")
for ks in range(4):
    A(f"v_xor_b32 v{vt[2]}, {32*ks}, v{vt[1]}\nv_add_u32 v{vXr[ks]}, v{vt[0]}, v{vt[2]}")
A(f"""v_bfe_u32 v{vt[0]}, v{vL}, 4, 1
v_mul_u32_u24 v{vt[0]}, {RP}, v{vt[0]}
v_lshrrev_b32 v{vt[1]}, 5, v{vL}
v_bfe_u32 v{vt[2]}, v{vL}, 2, 2
v_lshl_add_u32 v{vt[1]}, v{vt[1]}, 3, v{vt[2]}
v_mul_u32_u24 v{vt[1]}, 224, v{vt[1]}
v_and_b32 v{vt[2]}, 3, v{vL}
v_lshlrev_b32 v{vt[2]}, 3, v{vt[2]}
v_add3_u32 v{vT[0]}, v{vt[0]}, v{vt[1]}, v{vt[2]}
v_add_u32 v{vT[1]}, {2*RP}, v{vT[0]}""")
A(f"""v_mov_b32 v{vt[4]}, 0
v_mov_b32 v{vt[5]}, 0
v_mov_b32 v{vt[6]}, 0
v_mov_b32 v{vt[7]}, 0
v_and_b32 v{vt[0]}, 31, v{vL}
v_min_u32 v{vt[0]}, 23, v{vt[0]}
v_lshrrev_b32 v{vt[1]}, 5, v{vL}
v_mul_u32_u24 v{vt[1]}, {HP}, v{vt[1]}
v_lshl_add_u32 v{vt[0]}, v{vt[0]}, 4, v{vt[1]}
s_mul_i32 s{sT0}, s{sW}, {2*HP}
s_add_u32 s{sT0}, s{sT0}, {HT}
v_add_u32 v{vt[0]}, s{sT0}, v{vt[0]}
ds_write_b128 v{vt[0]}, {vr(vt[4])}""")
vKm, vKv, vKhh = 50, 51, 52
A(f"""v_sub_u32 v{vt[0]}, 7, v{vC8}
v_lshrrev_b32 v{vt[1]}, 5, v{vL}
s_lshl_b32 s{sT0}, s{sW}, 1
v_add_u32 v{vt[1]}, s{sT0}, v{vt[1]}
v_and_b32 v{vt[2]}, 3, v{vA8}
v_lshlrev_b32 v{vt[2]}, 2, v{vt[2]}
v_lshl_add_u32 v{vt[2]}, v{vt[0]}, 10, v{vt[2]}
v_xor_b32 v{vt[3]}, v{vt[1]}, v{vt[0]}
v_lshl_add_u32 v{vKhh}, v{vt[3]}, 4, v{vt[2]}
v_add_u32 v{vKhh}, {KS_K + 640}, v{vKhh}
v_add_u32 v{vt[3]}, 1, v{vt[0]}
v_and_b32 v{vt[3]}, 7, v{vt[3]}
v_xor_b32 v{vt[3]}, v{vt[1]}, v{vt[3]}
v_lshl_add_u32 v{vKm}, v{vt[3]}, 4, v{vt[2]}
v_add_u32 v{vKm}, {KS_K + 1024}, v{vKm}
v_add_u32 v{vKv}, 8192, v{vKm}""")
A(f"v_readfirstlane_b32 s{sTAG}, v{vE}")
S.append(WaitTag(vm="kv", lgkm0=True))
A(f"s_add_u32 s{sTAG}, s{sTAG}, 1\ns_barrier")
stamp()
A(f"""v_lshl_add_u32 v{vt[0]}, s{sW}, 6, v{vL}
v_lshlrev_b32 v{vt[0]}, 8, v{vt[0]}
v_mov_b32 v{vE}, 1
buffer_atomic_add v{vE}, v{vt[0]}, {srd(DBG_)}, 0 offen sc0 sc1""")

kraw = list(range(64, 76))
vraw = list(range(76, 84))
kf = 84
wf = 106
A(f"""ds_read2_b32 v[64:65], v{vKhh} offset0:0 offset1:32
ds_read_b32 v66, v{vKhh} offset:256""")
for i in range(4): A(f"ds_read2_b32 v[{68+2*i}:{69+2*i}], v{vKm} offset0:{64*i} offset1:{64*i+32}")
for i in range(4): A(f"ds_read2_b32 v[{76+2*i}:{77+2*i}], v{vKv} offset0:{64*i} offset1:{64*i+32}")
vHa = 53
A(f"v_add_u32 v{vHa}, s{sT7}, v{vL16}\nv_subrev_u32 v{vHa}, {3*HP + 8}, v{vHa}")
hd = [114, 120]
for n in range(2):
    A(f"ds_read_b64 v[{hd[n]}:{hd[n]+1}], v{vHa} offset:{3*HP + 1024*n}")
    A(f"ds_read_b128 {vr(hd[n]+2)}, v{vHa} offset:{3*HP + 1024*n + 8}")
for c in range(2):
    for h in range(2):
        A(f"v_lshlrev_b32 v{wf+4*h+c}, 16, v{vSK+2*c+h}\nv_and_b32 v{wf+4*h+2+c}, s{sHI}, v{vSK+2*c+h}")
ksrc = [64, 65, 66] + list(range(68, 76))
for i in range(11):
    A(f"v_lshlrev_b32 v{kf+2*i}, 16, v{ksrc[i]}\nv_and_b32 v{kf+2*i+1}, s{sHI}, v{ksrc[i]}")
def pr(a): return f"v[{a}:{a+1}]"
for i in range(8):
    A(f"v_pk_mul_f32 {pr(16+2*i)}, {pr(kf+2*(i+3))}, {pr(wf)}")
for tap in range(1, 4):
    for i in range(8):
        A(f"v_pk_fma_f32 {pr(16+2*i)}, {pr(kf+2*(i+3-tap))}, {pr(wf+2*tap)}, {pr(16+2*i)}")
for i in range(8):
    A(f"v_lshlrev_b32 v{kf+2*i}, 16, v{76+i}\nv_and_b32 v{kf+2*i+1}, s{sHI}, v{76+i}")
for i in range(8):
    A(f"v_pk_mul_f32 {pr(16+2*i)}, {pr(16+2*i)}, {pr(kf+2*i)}")
for c in range(2):
    for m in range(4):
        A(f"v_cvt_pk_bf16_f32 v{64+4*c+m}, v{16+2*(7-2*m)+c}, v{16+2*(6-2*m)+c}")
A(f"""v_lshlrev_b32 v{vt[0]}, 4, v{vC8}
v_lshl_add_u32 v{vt[0]}, v{vA8}, 13, v{vt[0]}
s_lshl_b32 s{sT0}, s{sDT}, 18
s_lshl_b32 s{sT1}, s{sW}, 16
s_add_u32 s{sT0}, s{sT0}, s{sT1}
s_lshl_b32 s{sT1}, s{sTT}, 7
s_sub_u32 s{sT0}, s{sT0}, s{sT1}
s_add_u32 s{sT0}, s{sT0}, {WS_KV + 2*1984}
s_add_u32 s{sT1}, s{sT0}, 4096""")
A(f"""buffer_store_dwordx4 v[64:67], v{vt[0]}, {srd(WS_)}, s{sT0} offen sc1
buffer_store_dwordx4 v[68:71], v{vt[0]}, {srd(WS_)}, s{sT1} offen sc1""", tag="kvst")
for n in range(2):
    e0, e1, d0, d1, d2, d3 = range(hd[n], hd[n] + 6)
    o = 84 + 12 * n
    A(f"""v_alignbit_b32 v{o}, v{e1}, v{e0}, 16
v_alignbit_b32 v{o+1}, v{d0}, v{e1}, 16
v_alignbit_b32 v{o+2}, v{d1}, v{d0}, 16
v_alignbit_b32 v{o+3}, v{d2}, v{d1}, 16
v_mov_b32 v{o+4}, v{e1}
v_mov_b32 v{o+5}, v{d0}
v_mov_b32 v{o+6}, v{d1}
v_mov_b32 v{o+7}, v{d2}
v_alignbit_b32 v{o+8}, v{d0}, v{e1}, 16
v_alignbit_b32 v{o+9}, v{d1}, v{d0}, 16
v_alignbit_b32 v{o+10}, v{d2}, v{d1}, 16
v_alignbit_b32 v{o+11}, v{d3}, v{d2}, 16""")
    for s in range(3):
        A(f"ds_write_b128 v{vHa}, {vr(o+4*s)} offset:{s*HP + 1024*n + 8}")
stamp()

def sig(s): return (s + 1) % 3
def w_dma(s):
    o = L(f"""s_add_u32 s{sT0}, s{sROT}, {s}
s_and_b32 s{sT0}, s{sT0}, 7
s_mul_i32 s{sT0}, s{sT0}, {64*3584}
s_add_u32 s{sT0}, s{sT0}, s{sWB}
s_add_u32 m0, s{sR}, {sig(s)*8192}""")
    for n in range(7):
        if n == 4: o += L(f"s_add_u32 m0, s{sR}, {sig(s)*8192 + 4096}")
        o += L(f"buffer_load_dwordx4 v{vWo[n]}, {srd(W_)}, s{sT0} offen offset:{1024*(n&3)} lds", tag=f"w{s}")
    return o
vS1 = [16, 17, 18, 19]; vS2 = [20, 21, 22, 23]; vOne = 24
A(f"v_mov_b32 v{vOne}, 0x3f803f80")
for r in vS1 + vS2: A(f"v_mov_b32 v{r}, 0")
def x_read(bt):
    return [WaitTag(vm=f"x{bt}")] + sum([L(f"ds_read_b128 {vr(XR+16*bt+4*ks)}, v{vXr[ks]} offset:{(bt%6)*4096}") for ks in range(4)], [])
def x_stats(bt):
    o = []
    for r in range(16):
        x = XR + 16*bt + r
        o += L(f"v_dot2_f32_bf16 v{vS1[r%4]}, v{x}, v{vOne}, v{vS1[r%4]}\nv_dot2_f32_bf16 v{vS2[r%4]}, v{x}, v{x}, v{vS2[r%4]}")
    return o
nxt = {1: lambda: x_dma(6) + x_dma(7), 3: lambda: w_dma(0), 5: lambda: w_dma(1), 7: lambda: w_dma(2)}
for p in range(4):
    S.extend(x_read(2*p) + x_read(2*p+1))
    S.append(WaitTag(lgkm0=True))
    S.extend(nxt[2*p+1]())
    if p == 1:
        pass
    S.extend(x_stats(2*p) + x_stats(2*p+1))
stamp()
def rnd(r): return f"v_cvt_pk_bf16_f32 v{r}, v{r}, v{r}\nv_lshlrev_b32 v{r}, 16, v{r}"
A(f"""v_add_f32 v16, v16, v17
v_add_f32 v18, v18, v19
v_add_f32 v20, v20, v21
v_add_f32 v22, v22, v23
v_add_f32 v16, v16, v18
v_add_f32 v20, v20, v22
v_mov_b32 v17, v16
v_mov_b32 v21, v20
v_permlane32_swap_b32 v16, v17
v_permlane32_swap_b32 v20, v21
v_add_f32 v16, v16, v17
v_add_f32 v20, v20, v21
v_mul_f32 v16, 0x3b000000, v16
v_mul_f32 v20, 0x3b000000, v20
v_fma_f32 v20, -v16, v16, v20
v_max_f32 v20, 0, v20
{rnd(16)}
{rnd(20)}
v_add_f32 v20, 0x3727c5ac, v20
{rnd(20)}
v_sqrt_f32 v20, v20
{rnd(20)}
v_rcp_f32 v{vRs}, v20
v_mul_f32 v{vMr}, v16, v{vRs}
v_sub_f32 v{vMr}, 0, v{vMr}""")
A(f"""v_and_b32 v16, 31, v{vL}
v_lshlrev_b32 v16, 3, v16
s_lshl_b32 s{sT0}, s{sFS}, 14
s_lshr_b32 s{sT1}, s{sXB}, 7
s_add_u32 s{sT0}, s{sT0}, s{sT1}
s_add_u32 s{sT0}, s{sT0}, {WS_ST}""")
A(f"buffer_store_dwordx2 v[{vRs}:{vMr}], v16, {srd(WS_)}, s{sT0} offen sc1", tag="stst")

def norm(kk):
    o = []
    for hlf in range(2):
        t = 16 + 4 * hlf
        for q in range(2):
            x = XR + 4*kk + 2*hlf + q
            o += L(f"v_lshlrev_b32 v{t+2*q}, 16, v{x}\nv_and_b32 v{t+2*q+1}, s{sHI}, v{x}")
        for q in range(4):
            o += L(f"v_fma_f32 v{t+q}, v{t+q}, v{vRs}, v{vMr}")
        for q in range(2):
            x = XR + 4*kk + 2*hlf + q
            o += L(f"v_cvt_pk_bf16_f32 v{x}, v{t+2*q}, v{t+2*q+1}")
    return o
NPRE = 4
for kk in range(NPRE): S.extend(norm(kk))

S.append(WaitTag(vm="w0"))
A(f"""s_lshl_b32 s{sT0}, s{sDT}, 9
s_lshl_b32 s{sT1}, s{sW}, 7
s_add_u32 s{sT0}, s{sT0}, s{sT1}
s_lshl_b32 s{sT1}, s{sTT}, 2
s_add_u32 s{sT0}, s{sT0}, s{sT1}
s_add_u32 s{sT0}, s{sT0}, {WS_KF}
v_mov_b32 v{vFl}, s{sTAG}
v_mov_b32 v24, 0""")
A(f"buffer_store_dword v{vFl}, v24, {srd(WS_)}, s{sT0} offen sc1")
A(f"""v_cmp_eq_u32 vcc, 0xff, v{vE}
v_mov_b32 v25, {OOB}
v_mov_b32 v26, {WS_EP}
v_cndmask_b32 v25, v25, v26, vcc""")
A(f"buffer_store_dword v{vFl}, v25, {srd(WS_)}, 0 offen sc1")

NB = 14
order = []
for s in range(7):
    for ks in range(4):
        for ti in range(7): order.append((s, ks, ti))
for ti in range(7):
    for ks in range(4): order.append((7, ks, ti))
main = []
seen = set()
for i, (s, ks, ti) in enumerate(order):
    kk = 4*s + ks
    c = "0" if ti not in seen else acc(ti)
    seen.add(ti)
    main.append(Ins(f"v_mfma_f32_32x32x16_bf16 {acc(ti)}, {ar(4*(i % NB))}, {vr(XR+4*kk)}, {c}"))
def frag_reads(i):
    s, ks, ti = order[i]
    b = 4 * (i % NB)
    off = sig(s)*8192 + 16*(ks & 1)*224 + 32*ti
    return L(f"ds_read_b64_tr_b16 a[{b}:{b+1}], v{vT[ks>>1]} offset:{off}\nds_read_b64_tr_b16 a[{b+2}:{b+3}], v{vT[ks>>1]} offset:{off+4*224}")
from collections import defaultdict
fill = defaultdict(list)
pre = []
LA = 7
def put(g, items):
    if g < 0: pre.extend(items)
    else: fill[g].extend(items)
vWd = 36
def wd_dma(ks0, nks, ldsoff, tag):
    o = []
    for n in range(2*nks):
        if n % 4 == 0:
            o += L(f"s_add_u32 m0, s{sR}, {ldsoff + 1024*n}\ns_add_u32 s{sT0}, s{sWDB}, {(16*ks0 + 8*n)*1024}")
        o += L(f"buffer_load_dwordx4 v{vWd + (n % 4)}, {srd(WD_)}, s{sT0} offen offset:{1024*(n%4)} lds", tag=tag)
    return o
for s in range(9):
    g0 = 28*s - LA - 1
    items = []
    if s < 8: items.append(WaitTag(vm=f"w{s}", lgkm0=True))
    else: items.append(WaitTag(lgkm0=True))
    items += L("s_barrier")
    put(g0, items)
    if s < 8:
        for n in range(28):
            put(g0 + (n * 24) // 28, frag_reads(28*s + n))
dma_after = {}
for s in range(1, 6): dma_after[s] = w_dma(s + 2)
for s in range(6, 9): dma_after[s] = wd_dma(4*(s-6), 4, (s-6)*8192, f"wd0{s-6}")
for s, items in dma_after.items():
    g = 28*s - LA
    cur = []
    for it in items:
        cur.append(it)
        if it.kind == 'vmem':
            put(min(g, 223), cur); cur = []; g += (2 if s < 8 else 1)
nops_ = []
for kk in range(NPRE, 32): nops_.append((kk, norm(kk)))
first_use = {}
for i, (s, ks, ti) in enumerate(order): first_use.setdefault(4*s+ks, i)
def cnt(g): return sum(1 for x in fill[g] if isinstance(x, Ins)) + sum(1 for x in fill[g] if isinstance(x, WaitTag))
g = 0
for kk, ops in nops_:
    for op in ops:
        while cnt(g) >= 5 and g < first_use[kk] - 2: g += 1
        fill[g].append(op)
    assert g <= first_use[kk] - 1, (kk, g, first_use[kk])
A(f"""v_lshrrev_b32 v16, 3, v{vL}
v_and_b32 v17, 7, v{vL}
v_bfe_u32 v18, v{vL}, 4, 1
v_lshlrev_b32 v18, 2, v18
v_xor_b32 v17, v17, v18
v_lshlrev_b32 v17, 4, v17
v_lshl_add_u32 v{vWd}, v16, 10, v17
v_add_u32 v{vWd+1}, 7168, v{vWd}
v_add_u32 v{vWd+2}, {2*7168}, v{vWd}
v_add_u32 v{vWd+3}, {3*7168}, v{vWd}
s_mul_i32 s{sWDB}, s{sW}, {448*1024}
s_lshl_b32 s{sT0}, s{sDT}, 7
s_add_u32 s{sWDB}, s{sWDB}, s{sT0}
s_lshl_b32 s{sT0}, s{sRB}, 2
s_add_u32 s{sT0}, s{sT0}, s{sW}
s_mul_i32 s{sHB}, s{sT0}, {112*1024}
s_mul_i32 s{sT0}, s{sFS}, {7*1024}
s_add_u32 s{sHB}, s{sHB}, s{sT0}""")
def epi1(ti):
    o = []
    if ti < 5:
        b = ACC[ti]
    else:
        b = XR + 16*(ti-5)
        for r in range(16): o += L(f"v_accvgpr_read_b32 v{b+r}, a{224+16*(ti-5)+r}")
    for r in range(8): o += L(f"v_max_f32 v{b+r}, 0, v{b+r}")
    for r in range(8): o += L(f"v_mul_f32 v{b+r}, v{b+r}, v{b+8+r}")
    for m in range(4): o += L(f"v_cvt_pk_bf16_f32 v{b+8+m}, v{b+2*m}, v{b+2*m+1}")
    if ti == 4: o += L(f"s_add_u32 s{sHB}, s{sHB}, 4096")
    o += L(f"buffer_store_dwordx4 {vr(b+8)}, v{vL16}, {srd(WS_)}, s{sHB} offen offset:{1024*(ti&3)} sc1", tag="hst")
    return o
tail = []
g = 0
for ti in range(7):
    ops = epi1(ti)
    g = max(g, 196 + 4*ti + 3 + 2)
    for op in ops:
        while g <= 223 and cnt(g) >= 6: g += 1
        if g <= 223: fill[g].append(op)
        else: tail.append(op)
S.extend(pre)
stamp()
S.extend(weave(main, fill))
S.extend(tail)
stamp()

A(f"""v_and_b32 v{vFa}, 31, v{vL}
v_lshlrev_b32 v{vFa}, 2, v{vFa}
s_lshr_b32 s{sT6}, s{sB}, 3
s_lshl_b32 s{sT6}, s{sT6}, 7
s_add_u32 s{sT6}, s{sT6}, {WS_KF}""")
S.extend(poll_issue(vFl, vFa, f"s{sT6}"))
S.extend(poll_check(vFl, vFa, f"s{sT6}"))
A(f"""s_lshl_b32 s{sT0}, s{sB}, 13
s_lshl_b32 s{sT1}, s{sW}, 11
s_add_u32 s{sT0}, s{sT0}, s{sT1}
s_add_u32 s{sT0}, s{sT0}, {WS_KV}
buffer_load_dwordx4 v[16:19], v{vL16}, {srd(WS_)}, s{sT0} offen sc1
buffer_load_dwordx4 v[20:23], v{vL16}, {srd(WS_)}, s{sT0} offen offset:1024 sc1
s_lshr_b32 s{sT2}, s{sW}, 1
s_mul_i32 s{sT3}, s{sT2}, {2*UP}
s_add_u32 s{sT3}, s{sT3}, {UA}
s_and_b32 s{sT1}, s{sW}, 1
s_lshl_b32 s{sT4}, s{sT1}, 11
s_add_u32 s{sT4}, s{sT4}, s{sT3}
v_add_u32 v24, s{sT4}, v{vL16}
s_mul_i32 s{sT5}, s{sT1}, {UP - 8}
s_add_u32 s{sT5}, s{sT5}, s{sT3}
s_add_u32 s{sT5}, s{sT5}, 4096
v_min_u32 v25, 14, v{vL}
v_lshlrev_b32 v25, 3, v25
v_add_u32 v25, s{sT5}, v25
v_mov_b32 v26, 0
v_mov_b32 v27, 0
ds_write_b64 v25, v[26:27]""")
for n in range(2):
    A(f"""ds_write_b128 v24, {vr(16+4*n)} offset:{1024*n}
ds_write_b64 v24, v[{16+4*n}:{17+4*n}] offset:{1024*n + UP - 8}
ds_write_b64 v24, v[{18+4*n}:{19+4*n}] offset:{1024*n + UP}""")
S.append(WaitTag(vm0=True))
A(f"""s_lshl_b32 s{sT0}, s{sRB}, 2
s_add_u32 s{sT0}, s{sT0}, s{sW}
s_lshl_b32 s{sT0}, s{sT0}, 4
s_add_u32 s{sT0}, s{sT0}, s{sFS}
s_lshl_b32 s{sT0}, s{sT0}, 2
s_add_u32 s{sT0}, s{sT0}, {WS_HF}
v_mov_b32 v{vFl}, s{sTAG}""")
A(f"buffer_store_dword v{vFl}, v26, {srd(WS_)}, s{sT0} offen sc1")
vCa, vCb, vCu = 1, 2, 3
vTd = [4, 5]
A(f"""v_and_b32 v16, 3, v{vL}
v_mul_u32_u24 v16, {HP}, v16
v_bfe_u32 v17, v{vL}, 2, 2
v_lshl_add_u32 v16, v17, 7, v16
v_lshrrev_b32 v18, 4, v{vL}
v_lshl_add_u32 v16, v18, 4, v16
s_mul_i32 s{sT0}, s{sT2}, {4*HP}
s_add_u32 s{sT0}, s{sT0}, {HT}
v_add_u32 v{vCa}, s{sT0}, v16
v_and_b32 v16, 1, v{vL}
v_xor_b32 v16, 1, v16
v_mul_u32_u24 v16, {UP}, v16
v_bfe_u32 v17, v{vL}, 1, 3
v_sub_u32 v17, 7, v17
v_add_u32 v17, v17, v18
v_lshl_add_u32 v16, v17, 4, v16
v_add_u32 v{vCb}, s{sT3}, v16
v_sub_u32 v16, 63, v{vL}
v_lshlrev_b32 v16, 3, v16
v_add_u32 v{vCu}, s{sT3}, v16""")
A(f"""v_lshrrev_b32 v16, 5, v{vL}
v_bfe_u32 v17, v{vL}, 2, 2
v_lshl_add_u32 v16, v16, 2, v17
v_lshlrev_b32 v16, 7, v16
v_bfe_u32 v17, v{vL}, 3, 1
v_lshl_add_u32 v16, v17, 6, v16
v_bfe_u32 v17, v{vL}, 4, 1
v_lshl_add_u32 v16, v17, 5, v16
v_and_b32 v17, 3, v{vL}
v_lshl_add_u32 v16, v17, 3, v16
v_add_u32 v{vTd[0]}, s{sR}, v16
v_xor_b32 v16, 64, v16
v_add_u32 v{vTd[1]}, s{sR}, v16""")
def wd_reads(ks0, nks, ldsoff):
    o = []
    for k in range(nks):
        for dt in range(2):
            b = 8*(ks0+k) + 4*dt
            off = ldsoff + 2048*k
            o += L(f"ds_read_b64_tr_b16 a[{b}:{b+1}], v{vTd[dt]} offset:{off}\nds_read_b64_tr_b16 a[{b+2}:{b+3}], v{vTd[dt]} offset:{off+1024}")
    return o
S.extend(wd_reads(0, 12, 0))
S.append(WaitTag(lgkm0=True))
S.extend(wd_dma(12, 12, 0, "wd1"))
A("s_barrier")
stamp()
A(f"""s_lshl_b32 s{sT0}, s{sD}, 16
s_and_b32 s{sT1}, s{sD}, s{sHI}
s_cmp_eq_u32 s{sT2}, 0
s_cselect_b32 s{sD}, s{sT0}, s{sT1}
s_lshl_b32 s{sT4}, s{sB}, 13
s_lshl_b32 s{sT5}, s{sT2}, 12
s_add_u32 s{sT4}, s{sT4}, s{sT5}
s_add_u32 s{sT4}, s{sT4}, {WS_Y}
v_lshlrev_b32 v6, 3, v{vL}
s_bitcmp1_b32 s{sW}, 0
s_cbranch_scc1 L_convB""")
CA = 8
FB = [128, 192]
def conv(qs, label):
    o = []
    accs = {q: CA + 4*n for n, q in enumerate(qs)}
    qm = max(qs)
    for n, q in enumerate(qs):
        o += L(f"ds_read_b64 v[{48+2*n}:{49+2*n}], v{vCu} offset:{4088 - 504 - 512*q}")
    def reads(z0):
        r_ = []
        b = FB[z0 & 1]
        for r in range(qm + 1):
            r_ += L(f"ds_read_b128 {vr(b+4*r)}, v{vCa} offset:{448 + 512*r - 64*z0}")
            r_ += L(f"ds_read_b128 {vr(b+32+4*r)}, v{vCb} offset:{4032 - 512*r - 64*z0}")
        return r_
    o += reads(0)
    for n, q in enumerate(qs):
        a = accs[q]; t = 48 + 2*n
        o += L(f"""v_and_b32 v{a}, s{sHI}, v{t+1}
v_lshlrev_b32 v{a+1}, 16, v{t+1}
v_and_b32 v{a+2}, s{sHI}, v{t}
v_lshlrev_b32 v{a+3}, 16, v{t}""")
        for r in range(4): o += L(f"v_mul_f32 v{a+r}, s{sD}, v{a+r}")
    for z0 in range(8):
        b = FB[z0 & 1]
        pairs = sorted([(r, q - r, q) for q in qs for r in range(q + 1)], key=lambda x: (max(x[0], x[1]), x[2]))
        mm = [Ins(f"v_mfma_f32_16x16x32_bf16 {vr(accs[q])}, {vr(b+4*r)}, {vr(b+32+4*p)}, {vr(accs[q])}") for r, p, q in pairs]
        f = defaultdict(list)
        if z0 < 7:
            for n, rd in enumerate(reads(z0 + 1)): f[n].append(rd)
        o += weave(mm, f)
    for n, q in enumerate(qs):
        a = accs[q]
        o += L(f"v_cvt_pk_bf16_f32 v{48+2*n}, v{a}, v{a+1}\nv_cvt_pk_bf16_f32 v{49+2*n}, v{a+2}, v{a+3}")
        o += L(f"buffer_store_dwordx2 v[{48+2*n}:{49+2*n}], v6, {srd(WS_)}, s{sT4} offen offset:{512*q} sc1", tag="yst")
    o.append(WaitTag(vm0=True, lgkm0=True))
    return o
S.append(State('save', 'conv'))
S.extend(conv([7, 6, 2], 'A'))
A("s_branch L_convE\nL_convB:")
S.append(State('restore', 'conv'))
S.extend(conv([5, 4, 3, 1, 0], 'B'))
A("L_convE:")
A(f"""s_and_b32 s{sT0}, s{sW}, 1
s_lshl_b32 s{sT0}, s{sT0}, 9
s_lshl_b32 s{sT1}, s{sB}, 1
s_add_u32 s{sT0}, s{sT0}, s{sT1}
s_add_u32 s{sT0}, s{sT0}, s{sT2}
s_lshl_b32 s{sT0}, s{sT0}, 2
s_add_u32 s{sT0}, s{sT0}, {WS_YF}
v_mov_b32 v{vFl}, s{sTAG}
v_mov_b32 v26, 0""")
A(f"buffer_store_dword v{vFl}, v26, {srd(WS_)}, s{sT0} offen sc1")
stamp()

A(f"""v_bfe_u32 v16, v{vL}, 2, 1
v_and_b32 v17, 3, v{vL}
v_lshl_add_u32 v16, v16, 4, v17
v_lshlrev_b32 v{vFa}, 2, v16
s_lshl_b32 s{sT6}, s{sTT}, 7
s_lshl_b32 s{sT0}, s{sW}, 4
s_add_u32 s{sT6}, s{sT6}, s{sT0}
s_add_u32 s{sT6}, s{sT6}, {WS_HF}""")
S.extend(poll_issue(vFl, vFa, f"s{sT6}"))
S.extend(wd_reads(12, 12, 0))
S.append(WaitTag(lgkm0=True))
S.extend(wd_dma(24, 4, 0, "wd2"))
S.extend(poll_check(vFl, vFa, f"s{sT6}"))
A(f"""s_mul_i32 s{sHB}, s{sTT}, {224*1024}
s_mul_i32 s{sT0}, s{sW}, {28*1024}
s_add_u32 s{sHB}, s{sHB}, s{sT0}""")
NH = 36
HR = 112
AC2 = 48
def h_load(n):
    ks, tt = n // 2, n % 2
    o = []
    off = tt * 112 * 1024 + ks * 1024
    o += L(f"s_add_u32 s{sT0}, s{sHB}, {off}")
    o += L(f"buffer_load_dwordx4 {vr(HR + 4*(n % NH))}, v{vL16}, {srd(WS_)}, s{sT0} offen sc1")
    return o
for n in range(NH): S.extend(h_load(n))
S.append(WaitTag(vm="wd2"))
S.extend(wd_reads(24, 4, 0))
mm = []; f = defaultdict(list)
for ks in range(28):
    for tt in range(2):
        n = 2*ks + tt
        for dt in range(2):
            a = vr(AC2 + 32*tt + 16*dt, 16)
            c = "0" if ks == 0 else a
            mm.append(Ins(f"v_mfma_f32_32x32x16_bf16 {a}, {ar(8*ks+4*dt)}, {vr(HR + 4*(n % NH))}, {c}"))
        if n + NH < 56: f[len(mm) - 1].extend(h_load(n + NH))
S.extend(weave(mm, f))
stamp()

PP = 272
A(f"""s_lshr_b32 s{sT0}, s{sTT}, 2
s_lshr_b32 s{sT1}, 0x3b, s{sT0}
s_and_b32 s{sT1}, s{sT1}, 1
s_lshl_b32 s{sT1}, s{sT1}, 11
s_lshl_b32 s{sT6}, s{sDT}, 8
s_add_u32 s{sT6}, s{sT6}, s{sT1}
s_lshl_b32 s{sT1}, s{sW}, 6
s_add_u32 s{sT6}, s{sT6}, s{sT1}
s_add_u32 s{sT6}, s{sT6}, {WS_YF}
v_and_b32 v{vFa}, 15, v{vL}
v_lshlrev_b32 v{vFa}, 2, v{vFa}""")
S.extend(poll_issue(vFl, vFa, f"s{sT6}"))
A(f"""v_lshrrev_b32 v1, 3, v{vL}
v_and_b32 v2, 7, v{vL}
v_lshlrev_b32 v3, 4, v2
v_lshl_add_u32 v3, v1, 10, v3
s_lshl_b32 s{sT3}, s{sTT}, 16
s_lshl_b32 s{sT0}, s{sW}, 14
s_add_u32 s{sT3}, s{sT3}, s{sT0}
s_lshr_b32 s{sT5}, s{sT3}, 7
s_lshl_b32 s{sT0}, s{sDT}, 7
s_add_u32 s{sT3}, s{sT3}, s{sT0}
s_add_u32 s{sT4}, s{sT3}, 8192
buffer_load_dwordx4 v[112:115], v3, {srd(X_)}, s{sT3} offen
buffer_load_dwordx4 v[116:119], v3, {srd(X_)}, s{sT4} offen
s_lshl_b32 s{sT0}, s{sW}, 16
s_add_u32 s{sT5}, s{sT5}, s{sT0}
s_add_u32 s{sT5}, s{sT5}, {WS_ST}
v_lshlrev_b32 v4, 3, v1
buffer_load_dwordx2 v[120:121], v4, {srd(WS_)}, s{sT5} offen sc1
buffer_load_dwordx2 v[122:123], v4, {srd(WS_)}, s{sT5} offen offset:64 sc1""")
A(f"""v_and_b32 v5, 31, v{vL}
v_mul_u32_u24 v5, {PP}, v5
v_lshrrev_b32 v6, 5, v{vL}
v_lshl_add_u32 v5, v6, 4, v5
v_add_u32 v5, s{sR}, v5""")
for tt in range(2):
    for dt in range(2):
        for m in range(4):
            A(f"ds_write_b128 v5, {vr(AC2 + 32*tt + 16*dt + 4*m)} offset:{32*tt*PP + 128*dt + 32*m}")
S.extend(poll_check(vFl, vFa, f"s{sT6}"))
A(f"""v_lshlrev_b32 v7, 4, v2
v_lshl_add_u32 v7, v1, 12, v7
s_lshl_b32 s{sT0}, s{sDT}, 18
s_lshl_b32 s{sT1}, s{sW}, 16
s_add_u32 s{sT0}, s{sT0}, s{sT1}
s_lshl_b32 s{sT1}, s{sTT}, 7
s_add_u32 s{sT0}, s{sT0}, s{sT1}
s_add_u32 s{sT0}, s{sT0}, {WS_Y}
s_add_u32 s{sT1}, s{sT0}, 32768
buffer_load_dwordx4 v[124:127], v7, {srd(WS_)}, s{sT0} offen sc1
buffer_load_dwordx4 v[128:131], v7, {srd(WS_)}, s{sT1} offen sc1""")
YP = 144
A(f"""v_mul_u32_u24 v8, {YP}, v1
v_lshl_add_u32 v8, v2, 4, v8
s_add_u32 s{sT0}, s{sR}, 17408
v_add_u32 v8, s{sT0}, v8
ds_write_b128 v8, v[124:127]
ds_write_b128 v8, v[128:131] offset:{8*YP}
v_bfe_u32 v9, v{vL}, 2, 2
v_mul_u32_u24 v9, {YP}, v9
v_and_b32 v10, 3, v{vL}
v_lshl_add_u32 v9, v10, 3, v9
v_lshrrev_b32 v10, 4, v{vL}
v_lshl_add_u32 v9, v10, 5, v9
v_add_u32 v9, s{sT0}, v9""")
S.append(WaitTag(lgkm0=True))
for j in range(4):
    A(f"ds_read_b64_tr_b16 v[{132+2*j}:{133+2*j}], v9 offset:{4*j*YP}")
Y2P = 144
A(f"""v_mul_u32_u24 v10, {Y2P}, v{vL}
s_lshl_b32 s{sT0}, s{sW}, 5
s_add_u32 s{sT0}, s{sT0}, {YS}
v_add_u32 v10, s{sT0}, v10
ds_write_b128 v10, v[132:135]
ds_write_b128 v10, v[136:139] offset:16""")
S.append(WaitTag(lgkm0=True))
A("s_barrier")
A(f"""s_lshl_b32 s{sT0}, s{sW}, 4
v_add_u32 v11, s{sT0}, v1
v_mul_u32_u24 v12, {PP}, v11
v_lshl_add_u32 v12, v2, 5, v12
v_add_u32 v13, {2*RP}, v12
v_mul_u32_u24 v14, {Y2P}, v11
v_lshl_add_u32 v14, v2, 4, v14
v_add_u32 v14, {YS}, v14""")
for p in range(2):
    for w in range(4):
        for hh in range(2):
            A(f"ds_read_b128 {vr(48 + 32*p + 8*w + 4*hh)}, v{12 + (w>>1)} offset:{(w&1)*RP + 8*p*PP + 16*hh}")
    A(f"ds_read_b128 {vr(140+4*p)}, v14 offset:{8*p*Y2P}")
for p in range(2):
    b = 48 + 32*p
    xs = 112 + 4*p; rs = 120 + 2*p; ys = 140 + 4*p
    t = 150
    for m in range(4):
        A(f"""v_lshlrev_b32 v{t+2*m}, 16, v{xs+m}
v_and_b32 v{t+2*m+1}, s{sHI}, v{xs+m}
v_lshlrev_b32 v{t+8+2*m}, 16, v{ys+m}
v_and_b32 v{t+8+2*m+1}, s{sHI}, v{ys+m}""")
    for e in range(8): A(f"v_fma_f32 v{t+16+e}, v{t+e}, v{rs}, v{rs+1}")
    for e in range(8): A(f"v_fma_f32 v{t+e}, v{t+16+e}, v{t+8+e}, v{t+e}")
    for e in range(0, 8, 2):
        A(f"v_pk_add_f32 {pr(b+e)}, {pr(b+e)}, {pr(b+8+e)}")
        A(f"v_pk_add_f32 {pr(b+16+e)}, {pr(b+16+e)}, {pr(b+24+e)}")
    for e in range(0, 8, 2): A(f"v_pk_add_f32 {pr(b+e)}, {pr(b+e)}, {pr(b+16+e)}")
    for e in range(0, 8, 2): A(f"v_pk_add_f32 {pr(b+e)}, {pr(b+e)}, {pr(t+e)}")
    for m in range(4): A(f"v_cvt_pk_bf16_f32 v{b+8+m}, v{b+2*m}, v{b+2*m+1}")
    A(f"buffer_store_dwordx4 {vr(b+8)}, v3, {srd(OUT_)}, s{sT3 if p == 0 else sT4} offen")
if PROF:
    S.append(WaitTag(vm0=True))
    stamp()
    A(f"s_memrealtime s[{sWG}:{sWG+1}]")
    S.append(WaitTag(lgkm0=True))
    for n in range(14): A(f"v_mov_b32 v{16+n}, " + (f"s{STP[n]}" if n < nstamp else "0"))
    A(f"v_mov_b32 v30, s{sWG}")
    A(f"s_getreg_b32 s{sT1}, hwreg(HW_REG_XCC_ID)\nv_mov_b32 v31, s{sT1}")
    A(f"""s_lshl_b32 s{sT0}, s{sB}, 2
s_add_u32 s{sT0}, s{sT0}, s{sW}
s_lshl_b32 s{sT0}, s{sT0}, 6
s_add_u32 s{sT0}, s{sT0}, {WS_PR}
v_mov_b32 v1, 0
buffer_store_dwordx4 v[16:19], v1, {srd(WS_)}, s{sT0} offen
buffer_store_dwordx4 v[20:23], v1, {srd(WS_)}, s{sT0} offen offset:16
buffer_store_dwordx4 v[24:27], v1, {srd(WS_)}, s{sT0} offen offset:32
buffer_store_dwordx4 v[28:31], v1, {srd(WS_)}, s{sT0} offen offset:48""")
A("L_end:\ns_endpgm")

body = finalize(S, verbose=False)
slow = SLOW
hdr = open("cdna_kernels/" + NAME + ".s.ref").read().split("; Override launch geometry")[0]
txt = hdr + f"; @launch grid=(256,1,1) block=(256,1,1) lds={LDS_SIZE}\n"
txt += f""".amdgcn_target "amdgcn-amd-amdhsa--gfx950"
.text
.globl {NAME}_kernel
.p2align 8
.type {NAME}_kernel,@function
{NAME}_kernel:
"""
for i in body + slow:
    txt += ("" if i.kind == 'label' else "    ") + i.text + "\n"
txt += f""".section .rodata,"a"
.p2align 6
.amdhsa_kernel {NAME}_kernel
  .amdhsa_next_free_vgpr 512
  .amdhsa_next_free_sgpr 102
  .amdhsa_accum_offset 256
  .amdhsa_group_segment_fixed_size 0
  .amdhsa_kernarg_size 104
  .amdhsa_user_sgpr_count 2
  .amdhsa_user_sgpr_kernarg_segment_ptr 1
  .amdhsa_system_sgpr_workgroup_id_x 1
  .amdhsa_float_denorm_mode_32 3
  .amdhsa_float_denorm_mode_16_64 3
.end_amdhsa_kernel
"""
out = [a for a in sys.argv[1:] if not a.startswith("--")]
open(out[0] if out else "cdna_kernels/" + NAME + ".s", "w").write(txt)
print("instrs:", len(body), file=sys.stderr)
```

```python
import re

RE_RANGE = re.compile(r'^([vas])\[(\d+):(\d+)\]$')
RE_ONE = re.compile(r'^([vas])(\d+)$')

def regs_of(tok):
    tok = tok.strip()
    neg = tok.lstrip('-')
    if neg.startswith('abs(') : neg = neg[4:-1]
    if neg.startswith('|'): neg = neg.strip('|')
    m = RE_RANGE.match(neg)
    if m: return [(m.group(1), i) for i in range(int(m.group(2)), int(m.group(3)) + 1)]
    m = RE_ONE.match(neg)
    if m: return [(m.group(1), int(m.group(2)))]
    if neg == 'vcc': return [('vcc', 0)]
    if neg == 'exec': return [('exec', 0)]
    if neg == 'm0': return [('m0', 0)]
    return []

TRANS = ('v_exp_f32', 'v_log_f32', 'v_rcp_f32', 'v_rsq_f32', 'v_sqrt_f32', 'v_sin_f32', 'v_cos_f32')

class Ins:
    __slots__ = ('text', 'op', 'kind', 'dst', 'src', 'tag', 'srcA', 'srcB', 'srcC', 'passes', 'dpp', 'lds', 'wide', 'meta')
    def __init__(self, text, tag=None):
        self.text = text; self.tag = tag; self.meta = None
        t = text.split(';')[0].strip()
        self.dst = []; self.src = []; self.srcA = self.srcB = self.srcC = []; self.passes = 0
        self.dpp = False; self.lds = False; self.wide = False
        if t.endswith(':') or t.startswith('.') or not t:
            self.op = t; self.kind = 'label' if t.endswith(':') else 'dir'; return
        parts = t.split(None, 1)
        op = parts[0]; self.op = op
        rest = parts[1] if len(parts) > 1 else ''
        ops = [o.strip() for o in rest.split(',')] if rest else []
        mods = ''
        if ops:
            last = ops[-1].split(None, 1)
            ops[-1] = last[0]
            mods = last[1] if len(last) > 1 else ''
        R = [regs_of(o) for o in ops]
        if op.startswith('v_mfma'):
            self.kind = 'mfma'
            self.dst = R[0]; self.srcA = R[1]; self.srcB = R[2]; self.srcC = R[3]
            self.src = R[1] + R[2] + R[3]
            self.passes = 8 if '32x32x16' in op else 4
        elif op.startswith('v_'):
            self.kind = 'valu'
            self.dpp = ('quad_perm' in rest or 'row_' in rest or 'wave_' in rest or op.endswith('_dpp'))
            if op.startswith('v_cmp'):
                self.dst = R[0]; self.src = sum(R[1:], [])
            elif '_co_' in op:
                self.dst = R[0] + R[1]; self.src = sum(R[2:], [])
            elif 'permlane' in op and 'swap' in op:
                self.dst = R[0] + R[1]; self.src = R[0] + R[1]
            elif op.startswith(('v_fmac', 'v_dot2c', 'v_pk_fmac', 'v_mac')):
                self.dst = R[0]; self.src = sum(R, [])
            elif op == 'v_nop':
                pass
            else:
                self.dst = R[0]; self.src = sum(R[1:], [])
                if self.dpp: self.src = self.src + R[0]
        elif op.startswith('ds_'):
            self.kind = 'ds'
            if op.startswith(('ds_read', 'ds_bpermute', 'ds_permute', 'ds_swizzle')):
                self.dst = R[0]; self.src = sum(R[1:], [])
            else:
                self.src = sum(R, [])
        elif op.startswith(('buffer_', 'global_')):
            self.kind = 'vmem'
            allm = ' ' + mods + ' '
            if op in ('buffer_wbl2', 'buffer_inv'):
                pass
            elif ' lds ' in allm:
                self.lds = True; self.src = sum(R, []) + [('m0', 0)]
            elif 'load' in op:
                self.dst = R[0]; self.src = sum(R[1:], [])
            elif 'atomic' in op:
                self.src = sum(R, [])
                if ' sc0 ' in allm: self.dst = R[0]
            else:
                self.src = sum(R, [])
                self.wide = op.endswith(('x3', 'x4'))
                self.meta = R[0] if op.startswith('buffer_') else R[1]
        elif op.startswith(('s_load', 's_memtime', 's_memrealtime', 's_buffer_load', 's_atomic')):
            self.kind = 'smem'; self.dst = R[0]; self.src = sum(R[1:], [])
        elif op == 's_waitcnt':
            self.kind = 'wait'
        elif op == 's_nop':
            self.kind = 'nop'
        elif op.startswith(('s_branch', 's_cbranch')):
            self.kind = 'branch'
        elif op in ('s_barrier', 's_endpgm', 's_sleep', 's_setprio', 's_waitcnt_raw'):
            self.kind = 'sctl'
        elif op.startswith('s_'):
            self.kind = 'salu'
            if op.startswith('s_cmp') or op.startswith('s_bitcmp'):
                self.src = sum(R, [])
            elif 'saveexec' in op:
                self.dst = R[0] + [('exec', 0)]; self.src = sum(R[1:], []) + [('exec', 0)]
            else:
                self.dst = R[0]; self.src = sum(R[1:], [])
        else:
            raise ValueError("unknown instr: " + text)
    def states(self):
        if self.kind == 'nop': return int(self.text.split()[1]) + 1
        if self.kind in ('label', 'dir'): return 0
        return 1

class WaitTag:
    def __init__(self, vm=None, lgkm0=False, vm0=False): self.vm = vm; self.lgkm0 = lgkm0; self.vm0 = vm0
class WaitRegs:
    def __init__(self, toks): self.regs = set(sum([regs_of(t) for t in toks], []))
class State:
    def __init__(self, act, name): self.act = act; self.name = name

def I(text, tag=None): return Ins(text, tag)

def parse_wait(text):
    vm = re.search(r'vmcnt\((\d+)\)', text); lg = re.search(r'lgkmcnt\((\d+)\)', text)
    return (int(vm.group(1)) if vm else None, int(lg.group(1)) if lg else None)

def finalize(stream, verbose=False):
    out = []
    vm = []
    lg = []
    saved = {}
    lastscc = ['']
    nwait = nnop = 0
    def emit_wait(v, l):
        nonlocal vm, lg, nwait
        parts = []
        if v is not None and v < len(vm):
            v = min(v, 63); parts.append(f"vmcnt({v})"); vm = vm[len(vm) - v:] if v else []
        if l is not None and l < len(lg):
            if any(s for _, s in lg): l = 0
            l = min(l, 15); parts.append(f"lgkmcnt({l})"); lg = lg[len(lg) - l:] if l else []
        if parts:
            out.append(Ins("s_waitcnt " + " ".join(parts))); nwait += 1
    def need(lst, regs):
        last = -1
        for n, e in enumerate(lst):
            if e[0] & regs: last = n
        return None if last < 0 else len(lst) - 1 - last
    def hazard(ins):
        req = 0
        dist = 0
        src = set(ins.src); dst = set(ins.dst)
        for p in reversed(out):
            if dist > 24: break
            if p.kind in ('label',):
                pass
            n = 0
            pd = set(p.dst)
            if p.kind == 'valu':
                isdot = p.op.startswith('v_dot')
                vd = {r for r in pd if r[0] in 'va'}
                sd = {r for r in pd if r[0] in ('s', 'vcc')}
                if ins.kind == 'mfma' and vd & src: n = max(n, 3 if isdot else 2)
                if ins.kind == 'valu':
                    if isdot and (vd & (src | dst)):
                        if ins.op == p.op and not (vd & set(sum([regs_of(x) for x in opnds(ins)[1:3]], []))): pass
                        else: n = max(n, 3)
                    if ins.dpp and vd & src: n = max(n, 2)
                    if 'permlane' in ins.op and vd & src: n = max(n, 2)
                    if ins.op.startswith(('v_readfirstlane', 'v_readlane')) and vd & src: n = max(n, 1)
                    if p.op.startswith(TRANS) and not ins.op.startswith(TRANS) and vd & src: n = max(n, 1)
                    if sd & src: n = max(n, 4 if ins.op.startswith(('v_readlane', 'v_writelane')) else 2)
                    if ('sdwa' in p.text or 'op_sel' in p.text) and vd & (src | dst): n = max(n, 1)
                if ins.kind in ('ds', 'vmem') and isdot and vd & src: n = max(n, 3)
                if ins.kind == 'vmem' and sd & src: n = max(n, 5)
                if ins.kind in ('salu', 'branch') and sd & (src | ({('vcc', 0)} if 'vcc' in ins.op else set())): n = max(n, 2)
            elif p.kind == 'mfma':
                big = 12 if p.passes == 8 else 8
                if ins.kind == 'mfma':
                    if pd & set(ins.srcA + ins.srcB): n = max(n, big)
                    if pd & set(ins.srcC):
                        if not (p.dst == ins.srcC and p.passes == ins.passes): n = max(n, big - 2)
                    elif pd & dst: n = max(n, big)
                elif ins.kind in ('valu', 'ds', 'vmem'):
                    if pd & (src | dst): n = max(n, big)
                    if ins.kind == 'valu' and set(p.srcC) & dst: n = max(n, 7 if p.passes == 8 else 3)
            elif p.kind == 'salu':
                if ('m0', 0) in pd and ins.kind == 'vmem' and ins.lds: n = max(n, 1)
            elif p.kind == 'vmem':
                if p.wide and set(p.meta) & dst: n = max(n, 2)
            if n - dist > req: req = n - dist
            dist += p.states()
        return req
    def opnds(ins):
        t = ins.text.split(';')[0].strip().split(None, 1)
        return [o.strip().split()[0] for o in t[1].split(',')]
    for it in stream:
        if isinstance(it, str):
            for line in it.split('\n'):
                if line.strip(): _one(Ins(line), out, locals()) if False else None
            raise ValueError("raw str in stream: " + it)
        if isinstance(it, State):
            if it.act == 'save': saved[it.name] = (list(vm), list(lg))
            elif it.act == 'setvm':
                vm = [(set(i.dst), i.tag) for i in it.name if isinstance(i, Ins) and i.kind == 'vmem']; lg = []
            elif it.act == 'restore': vm, lg = list(saved[it.name][0]), list(saved[it.name][1])
            elif it.act == 'check':
                a = [e[1] for e in saved[it.name][0]]; b = [e[1] for e in vm]
                assert a == b and len(saved[it.name][1]) == len(lg) == 0, ("state mismatch", it.name, a, b, len(lg))
                vm = [(x[0] | y[0], x[1]) for x, y in zip(vm, saved[it.name][0])]
            continue
        if isinstance(it, WaitRegs):
            emit_wait(need(vm, it.regs), need(lg, it.regs))
            continue
        if isinstance(it, WaitTag):
            v = None
            if it.vm0: v = 0
            elif it.vm is not None:
                tags = it.vm if isinstance(it.vm, (list, tuple, set)) else [it.vm]
                last = -1
                for n, e in enumerate(vm):
                    if e[1] in tags: last = n
                v = None if last < 0 else len(vm) - 1 - last
            emit_wait(v, 0 if it.lgkm0 else None)
            continue
        ins = it
        if ins.kind == 'wait':
            v, l = parse_wait(ins.text)
            emit_wait(v, l)
            continue
        if ins.kind not in ('label', 'dir'):
            regs = set(ins.src) | set(ins.dst)
            emit_wait(need(vm, regs), need(lg, regs))
            h = hazard(ins)
            while h > 0:
                k = min(h, 16); out.append(Ins(f"s_nop {k-1}")); h -= k; nnop += 1
        if ins.kind == 'salu':
            if ins.op.startswith('s_cselect'):
                assert lastscc[0].startswith(('s_cmp', 's_bitcmp')), ("SCC clobbered", lastscc[0], ins.text)
            elif ins.op.startswith('s_addc'):
                assert lastscc[0].startswith('s_add_u32'), ("SCC clobbered", lastscc[0], ins.text)
            if not ins.op.startswith(('s_mov', 's_cselect', 's_mul_i32', 's_getpc', 's_getreg')): lastscc[0] = ins.op
        if ins.kind == 'branch' and 'scc' in ins.op:
            assert lastscc[0].startswith(('s_cmp', 's_bitcmp', 's_sub_u32')), ("SCC clobbered", lastscc[0], ins.text)
        out.append(ins)
        if ins.kind == 'vmem':
            vm.append((set(ins.dst), ins.tag))
            assert len(vm) <= 63, "too many vmem in flight"
        elif ins.kind == 'ds':
            lg.append((set(ins.dst), False))
        elif ins.kind == 'smem':
            lg.append((set(ins.dst), True))
    if verbose: print(f"; finalize: {len(out)} instrs, {nwait} waits, {nnop} nops")
    return out

def weave(main, fillers):
    out = list(fillers.get(-1, []))
    for i, m in enumerate(main):
        out.append(m)
        out.extend(fillers.get(i, []))
    return out


class Sched:
    def __init__(self, n):
        from collections import defaultdict
        self.n = n; self.f = defaultdict(list); self.streams = []
    def cost(self, items): return len([x for x in items if not (isinstance(x, Ins) and x.kind == 'label')])
    def pin(self, g, items): self.f[g].extend(items)
    def flex(self, units, rel, dead, pace=0):
        k = len(units)
        rel = rel if isinstance(rel, list) else [rel] * k
        dead = dead if isinstance(dead, list) else [dead] * k
        dead = list(dead)
        for i in range(k - 2, -1, -1): dead[i] = min(dead[i], dead[i + 1])
        for i in range(k): assert rel[i] <= dead[i], ("release after deadline", i, rel[i], dead[i])
        self.streams.append((units, rel, dead, pace))
    def _try(self, bud):
        from collections import defaultdict
        f = defaultdict(list, {g: list(v) for g, v in self.f.items()})
        pos = [0] * len(self.streams); last = [-10**9] * len(self.streams)
        credit = 0.0; over = 0
        for g in range(self.n):
            credit = min(credit, 0.0) + bud if False else credit + bud
            used = self.cost(f[g])
            cap = int(credit + 1e-9)
            while True:
                cand = []
                for si, (u, r, d, p) in enumerate(self.streams):
                    i = pos[si]
                    if i < len(u) and r[i] <= g and (g - last[si] >= p or d[i] <= g): cand.append((d[i], si))
                if not cand: break
                cand.sort()
                placed = False
                for d, si in cand:
                    u = self.streams[si][0][pos[si]]
                    c = self.cost(u)
                    if used + c <= cap or d <= g or (used < cap - 1 and c > 2 and used + c <= cap + 3):
                        f[g].extend(u); used += c; pos[si] += 1; last[si] = g
                        placed = True
                        break
                if not placed: break
            credit -= max(used, cap) if used > cap else cap
            credit = max(credit, 0.0)
        left = sum(len(st[0]) - pos[si] for si, st in enumerate(self.streams))
        return f, over, left
    def solve(self, lo=4.0, hi=9.0, free=6):
        best = None
        b = lo
        while b < hi:
            f, over, left = self._try(b)
            if left == 0:
                c = sum(max(free, self.cost(f[g])) for g in range(self.n))
                if best is None or c < best[0]: best = (c, f, b)
            b += 0.05
        return best[1], (best[2], best[0])
```

```python
import sys
from collections import defaultdict
from asmlib import *

NAME = "parallel_sum__ssm_conv_h3__glu_gated_reglu__prompt"
PROF = "--prof" in sys.argv
def opt(name, dflt):
    for a in sys.argv:
        if a.startswith(f"--{name}="): return type(dflt)(a.split("=")[1])
    return dflt
MAP = opt("map", 48)
NPRE = opt("npre", 2)
CODEPF = opt("codepf", 2)
WARM = opt("warm", 1)
ROT2 = opt("rot2", 1)
SLEEP = opt("sleep", 3)
NTX = " nt" if opt("ntx", 0) else ""
NTK = " nt" if opt("ntk", 1) else ""
NTW = " nt" if opt("ntw", 0) else ""
NTD = " nt" if opt("ntd", 0) else ""
L2PF = opt("l2pf", 0)

WS_H  = 0x000000
WS_KV = 0x800000
WS_Y  = 0xA00000
WS_ST = 0xC00000
WS_EP = 0xC43000
WS_PR = 0xC50000
WS_KF = 0xC60000
WS_HF = 0xC80000
WS_YF = 0xCA0000
WS_SIZE = 0xD00000
RP = 24704
HT = 4 * RP
HP = 4512
UA = HT + 8 * HP
UP = 4224
KS_K = UA
YS = UA + 17408
XS = HT
XCH = HT
LDS_SIZE = 163840
sB, sW = 2, 3
sRB, sFS, sTT, sDT, sROT = 4, 5, 6, 7, 8
sT0, sT1, sT2 = 9, 10, 11
sTAG, sD, sR, sHI, sCNT = 12, 13, 14, 15, 16
sXB, sXS = 17, 18
sK0, sK1, sK2, sK3, sK4, sH3 = 19, 20, 21, 22, 23, 28
sWG, sWU = 24, 26
sEX = 30
sWS = [32, 33, 34, 35, 36, 37, 38, 39]
sWDO, sWDE, sWDS = 40, 41, 42
sHB = 43
sKVS, sKVF, sSTW, sWM1, sWM2 = 80, 81, 82, 83, 84
sPK, sPH, sPY = 85, 86, 87
sHF, sHO, sHE, sHS = 24, 25, 26, 27
sYB, sYF, sO0, sSTR, sYT = 0, 1, 29, 17, 18
sPC = 4
def srd(n): return f"s[{n}:{n+3}]"
X_, K_, V_, SH_, SSM_, W_, WD_, OUT_, WS_ = 44, 48, 52, 56, 60, 64, 68, 72, 76
sRT = 88
STP = [90, 92, 94, 96, 98, 100] + [48, 50, 52, 54, 56, 58, 60]
if opt("stamps", "main") == "p": STP = [90, 92, 94, 96, 98, 100, 48]

S = []
SLOW = []
def L(t, tag=None):
    return [Ins(line.strip(), tag) for line in t.split('\n') if line.strip()]
def A(t, tag=None): S.extend(L(t, tag))
def vr(a, n=4): return f"v[{a}:{a+n-1}]"
def ar(a, n=4): return f"a[{a}:{a+n-1}]"
def pr(a): return f"v[{a}:{a+1}]"
nstamp = 0
SEL = opt("stamps", "main").split(",")
def stampL(name="main"):
    global nstamp
    if PROF and (name in ("start", "end") or name in SEL):
        nstamp += 1
        return L(f"{'s_memrealtime' if opt('rt', 0) else 's_memtime'} s[{STP[nstamp-1]}:{STP[nstamp-1]+1}]")
    return []
def stamp(name="main"): S.extend(stampL(name))

def groups(items):
    gs = []; cur = []
    for it in items:
        cur.append(it)
        if isinstance(it, Ins) and it.kind == 'vmem': gs.append(cur); cur = []
    if cur: gs.append(cur)
    return gs
def meter(work, dmas, first=0):
    gs = groups(dmas)
    out = []
    n = len(work); k = len(gs)
    pos = [first + ((n - first) * i) // k for i in range(k)] if k else []
    gi = 0
    for i, wk in enumerate(work):
        while gi < k and pos[gi] <= i: out.extend(gs[gi]); gi += 1
        out.append(wk)
    while gi < k: out.extend(gs[gi]); gi += 1
    return out

npoll = 0
def poll_issue(vF, vAddr, soff):
    return L(f"buffer_load_dword v{vF}, v{vAddr}, {srd(WS_)}, s{soff} offen sc1")
def poll_check(vF, vAddr, soff):
    global npoll
    n = npoll; npoll += 1
    o = L(f"v_cmp_ne_u32 vcc, s{sTAG}, v{vF}\ns_cbranch_vccnz L_slow{n}\nL_back{n}:")
    SLOW.extend(L(f"""L_slow{n}:
s_mov_b32 s{sCNT}, 0x40000
L_spin{n}:
buffer_load_dword v{vF}, v{vAddr}, {srd(WS_)}, s{soff} offen sc1
s_waitcnt vmcnt(0)
v_cmp_ne_u32 vcc, s{sTAG}, v{vF}
s_sub_u32 s{sCNT}, s{sCNT}, 1
s_cbranch_scc1 L_back{n}
s_nop 1
s_cbranch_vccz L_back{n}
s_sleep {SLEEP}
s_branch L_spin{n}"""))
    return o
def flag_store(soff): return L(f"buffer_store_dword v{vTg}, v{vZ}, {srd(WS_)}, s{soff} offen sc1")

vL = 0
vXr = [1, 2, 3, 4]
vWo = [5, 6, 7, 8, 9, 10, 11]
vT = [12, 13]
vRs, vMr = 14, 15
vt = list(range(16, 24))
vKm, vKv, vKhh, vHa = 24, 25, 26, 27
vUz, vUw, vKs, vTg, vZ, vL16, vFl, vFa = 28, 29, 30, 31, 32, 33, 34, 35
vWd = 36
vKo = 40
vKa, vKb, vKh, vSh = 40, 41, 42, 43
vSK = 44
ACC = [48, 64, 80, 96, 112]
XR = 128
def acc(ti): return vr(ACC[ti], 16) if ti < 5 else ar(224 + 16 * (ti - 5), 16)
PARK = {}
def park(name, v):
    PARK[name] = 200 + len(PARK)
    assert PARK[name] < 224
    return L(f"v_accvgpr_write_b32 a{PARK[name]}, v{v}")
def unpark(name, v): return L(f"v_accvgpr_read_b32 v{v}, a{PARK[name]}")

A(f"s_cmp_ge_u32 s{sB}, 256\ns_cbranch_scc1 L_end")
stamp("start")
if PROF: A(f"s_memrealtime s[{sRT}:{sRT+1}]")
A(f"s_load_dwordx2 s[{X_}:{X_+1}], s[0:1], 0\ns_load_dwordx4 s[{sWG}:{sWG+3}], s[0:1], 56")
for sr, off in [(WS_, 96), (K_, 8), (V_, 16), (SH_, 24), (SSM_, 32), (sEX, 40), (WD_, 72), (OUT_, 80)]:
    A(f"s_load_dwordx2 s[{sr}:{sr+1}], s[0:1], {off}")
if CODEPF >= 2:
    A(f"""s_getpc_b64 s[4:5]
s_lshr_b32 s6, s{sB}, 3
s_lshl_b32 s6, s6, 10
v_lshrrev_b32 v2, 5, v0
v_lshl_add_u32 v2, v2, 7, s6
v_min_u32 v2, CODE_LAST, v2
global_load_dword v59, v2, s[4:5]{" nt" if CODEPF == 3 else ""}""")
A(f"v_lshrrev_b32 v1, 6, v0\nv_and_b32 v{vL}, 63, v0\nv_readfirstlane_b32 s{sW}, v1")
def srd_consts(lst):
    return sum([L(f"s_mov_b32 s{sr+2}, {size}\ns_mov_b32 s{sr+3}, 0x20000") for sr, size in lst], [])
S.extend(srd_consts([(X_, 2097152), (W_, 1835008)]))
if MAP == 84:
    A(f"""s_bfe_u32 s{sDT}, s{sB}, 0x30003
s_lshr_b32 s{sT0}, s{sB}, 6
s_and_b32 s{sT1}, s{sB}, 1
s_lshl_b32 s{sRB}, s{sT1}, 3
s_add_u32 s{sRB}, s{sRB}, s{sDT}
s_and_b32 s{sFS}, s{sB}, 6
s_lshl_b32 s{sFS}, s{sFS}, 1
s_add_u32 s{sFS}, s{sFS}, s{sT0}
s_lshl_b32 s{sTT}, s{sT1}, 4
s_add_u32 s{sTT}, s{sTT}, s{sFS}
s_lshl_b32 s{sROT}, s{sT0}, 1""")
else:
    A(f"""s_bfe_u32 s{sDT}, s{sB}, 0x30003
s_and_b32 s{sT1}, s{sB}, 3
s_lshl_b32 s{sRB}, s{sT1}, 2
s_bfe_u32 s{sT0}, s{sB}, 0x20003
s_add_u32 s{sRB}, s{sRB}, s{sT0}
s_lshr_b32 s{sROT}, s{sB}, 5
s_and_b32 s{sT2}, s{sB}, 4
s_lshl_b32 s{sFS}, s{sT2}, 1
s_add_u32 s{sFS}, s{sFS}, s{sROT}
s_lshl_b32 s{sTT}, s{sT1}, 3
s_add_u32 s{sTT}, s{sTT}, s{sT2}
s_lshr_b32 s{sT0}, s{sB}, 6
s_add_u32 s{sTT}, s{sTT}, s{sT0}""")
A(f"""s_mul_i32 s{sR}, s{sW}, {RP}
s_lshl_b32 s{sXB}, s{sRB}, 17
s_lshl_b32 s{sT1}, s{sW}, 15
s_add_u32 s{sXB}, s{sXB}, s{sT1}
s_lshl_b32 s{sXS}, s{sW}, 13
s_add_u32 s{sXS}, s{sXS}, {XS}""")
vA8, vC8 = 48, 49
vXg = [54, 55, 56, 57]
A(f"""v_lshrrev_b32 v{vA8}, 3, v{vL}
v_and_b32 v{vC8}, 7, v{vL}
v_lshlrev_b32 v{vL16}, 4, v{vL}
v_lshrrev_b32 v{vt[0]}, 4, v{vL}
v_xor_b32 v{vt[1]}, v{vt[0]}, v{vC8}
v_lshlrev_b32 v{vt[1]}, 4, v{vt[1]}
v_lshl_add_u32 v{vXg[0]}, v{vA8}, 10, v{vt[1]}
v_xor_b32 v{vXg[1]}, 64, v{vXg[0]}
v_add_u32 v{vXg[2]}, {7168*2}, v{vXg[0]}
v_add_u32 v{vXg[3]}, {7168*3}, v{vXg[1]}
v_add_u32 v{vXg[1]}, 7168, v{vXg[1]}""")
S.append(WaitTag(lgkm0=True))
stamp("p")

def x_dma(bt):
    o = L(f"""s_add_u32 s{sT0}, s{sROT}, {bt}
s_and_b32 s{sT0}, s{sT0}, 7
s_lshl_b32 s{sT0}, s{sT0}, 7
s_add_u32 m0, s{sXS if bt & 2 else sR}, {(bt & 1) * 4096}
s_add_u32 s{sT0}, s{sT0}, s{sXB}""")
    for rg in range(4):
        o += L(f"buffer_load_dwordx4 v{vXg[rg]}, {srd(X_)}, s{sT0} offen offset:{1024*rg}{NTX} lds", tag=f"x{bt}")
    return o
def sig(s): return (s + 1) % 3
def w_dma(s):
    o = []
    for n in range(7):
        if n % 4 == 0: o += L(f"s_add_u32 m0, s{sR}, {sig(s)*8192 + 1024*n}")
        o += L(f"buffer_load_dwordx4 v{vWo[n]}, {srd(W_)}, s{sWS[s]} offen offset:{1024*(n&3)}{NTW} lds", tag=f"w{s}")
    return o
S.extend(x_dma(0))
t0, t1, t2, t3 = vt[0], vt[1], vt[2], vt[3]
S.extend(srd_consts([(K_, 2097152), (V_, 2097152), (SH_, 4096)]))
A(f"""s_add_u32 s{sT2}, s{sW}, 1
v_xor_b32 v{vKa}, s{sT2}, v{vC8}
v_lshlrev_b32 v{vKa}, 4, v{vKa}
v_lshl_add_u32 v{vKa}, v{vA8}, 10, v{vKa}
v_xor_b32 v{vKb}, 64, v{vKa}
s_lshl_b32 s{sK0}, s{sTT}, 16
s_lshl_b32 s{sK1}, s{sDT}, 7
s_add_u32 s{sK0}, s{sK0}, s{sK1}
s_sub_u32 s{sK1}, s{sK0}, 8192
v_lshlrev_b32 v{t3}, 4, v{vC8}
v_lshl_add_u32 v{t3}, v{vA8}, 10, v{t3}""")
S.extend(park("xo", t3))
A(f"""v_add_u32 v{vKh}, s{sK1}, v{t3}
s_lshl_b32 s{sK1}, s{sW}, 13
s_add_u32 s{sK0}, s{sK0}, s{sK1}
s_mov_b32 s{sO0}, s{sK0}
s_add_u32 s{sK1}, s{sK0}, 32768
v_lshlrev_b32 v{vSh}, 4, v{vA8}
s_lshl_b32 s{sK2}, s{sDT}, 9
s_lshl_b32 s{sT1}, s{sW}, 7
s_add_u32 s{sK2}, s{sK2}, s{sT1}
s_lshl_b32 s{sK3}, s{sT2}, 10
s_add_u32 s{sK3}, s{sK3}, {KS_K}
s_lshr_b32 s{sT2}, s{sW}, 1
s_mul_i32 s{sT2}, s{sT2}, {4*HP - 4096}
s_lshl_b32 s{sT1}, s{sW}, 11
s_add_u32 s{sT2}, s{sT2}, s{sT1}
s_add_u32 s{sH3}, s{sT2}, {HT + 3*HP + 384}
s_lshl_b32 s{sK4}, s{sB}, 13
s_add_u32 s{sK4}, s{sK4}, s{sT1}""")
KVEARLY = opt("kvearly", 1)
kvl0 = L(f"""s_mov_b32 m0, {KS_K}
s_mov_b64 exec, vcc
buffer_load_dwordx4 v{vKh}, {srd(K_)}, 0 offen{NTK} lds
s_mov_b64 exec, -1""", tag="kv")
kvl1 = L(f"""s_mov_b32 m0, s{sK3}
buffer_load_dwordx4 v{vKa}, {srd(K_)}, s{sK0} offen{NTK} lds
s_add_u32 m0, s{sK3}, 4096
buffer_load_dwordx4 v{vKb}, {srd(K_)}, s{sK1} offen{NTK} lds
s_add_u32 m0, s{sK3}, 8192
buffer_load_dwordx4 v{vKa}, {srd(V_)}, s{sK0} offen{NTK} lds
s_add_u32 m0, s{sK3}, 12288
buffer_load_dwordx4 v{vKb}, {srd(V_)}, s{sK1} offen{NTK} lds
buffer_load_dwordx4 {vr(vSK)}, v{vSh}, {srd(SH_)}, s{sK2} offen""", tag="kv")
A(f"""s_lshl_b32 s{sT1}, s{sW}, 4
s_mov_b64 vcc, 0xffff
s_lshl_b64 vcc, vcc, s{sT1}""")
S.extend(kvl0 + kvl1)
for n in range(7):
    A(f"""v_add_u32 v{vt[0]}, {64*n}, v{vL}
v_mul_u32_u24 v{vt[1]}, 4682, v{vt[0]}
v_lshrrev_b32 v{vt[1]}, 16, v{vt[1]}
v_mul_u32_u24 v{vt[2]}, {3584 - 224}, v{vt[1]}
v_add_u32 v{vWo[n]}, v{vL16}, v{vt[2]}""")
    if n >= 4: A(f"v_add_u32 v{vWo[n]}, 4096, v{vWo[n]}")
A(f"""s_lshr_b32 s{sT1}, s{sW}, 1
s_mul_i32 s{sT2}, s{sT1}, {32*3584}
s_mul_i32 s{sT1}, s{sFS}, 224
s_add_u32 s{sT2}, s{sT2}, s{sT1}""")
def ws_calc(s): return L(f"""s_add_u32 s{sWS[s]}, s{sROT}, {s}
s_and_b32 s{sWS[s]}, s{sWS[s]}, 7
s_mul_i32 s{sWS[s]}, s{sWS[s]}, {64*3584}
s_add_u32 s{sWS[s]}, s{sWS[s]}, s{sT2}""")
for s in range(8): S.extend(ws_calc(s))
A(f"""s_bitcmp1_b32 s{sW}, 0
s_cselect_b32 s{W_}, s{sWU}, s{sWG}
s_cselect_b32 s{W_+1}, s{sWU+1}, s{sWG+1}""")
W0EARLY = opt("w0early", 1)
if W0EARLY >= 1: S.extend(w_dma(0))
A(f"""s_add_u32 s0, s{WS_}, {WS_EP}
s_addc_u32 s1, s{WS_+1}, 0
s_load_dword s{sTAG}, s[0:1], 0
s_lshl_b32 s{sT1}, s{sB}, 2
s_add_u32 s{sEX}, s{sEX}, s{sT1}
s_addc_u32 s{sEX+1}, s{sEX+1}, 0
s_load_dword s{sD}, s[{sEX}:{sEX+1}], 0""")
if CODEPF == 1:
    A(f"""s_getpc_b64 s[{sWG}:{sWG+1}]
s_lshr_b32 s{sT1}, s{sB}, 3
s_lshl_b32 s{sT1}, s{sT1}, 2
s_add_u32 s{sT1}, s{sT1}, s{sW}
s_lshl_b32 s{sT1}, s{sT1}, 8
s_min_u32 s{sT1}, s{sT1}, CODE_LAST
s_add_u32 s{sWG}, s{sWG}, s{sT1}
s_addc_u32 s{sWG+1}, s{sWG+1}, 0
s_load_dword s{sWU}, s[{sWG}:{sWG+1}], 0
s_load_dword s{sWU+1}, s[{sWG}:{sWG+1}], 128""")
stamp("p")
t0, t1, t2, t3 = vt[0], vt[1], vt[2], vt[3]
S.extend(srd_consts([(SSM_, 2097152), (WD_, 1835008), (OUT_, 2097152), (WS_, WS_SIZE)]))
A(f"s_mov_b32 s{sHI}, 0xffff0000\nv_lshlrev_b32 v{vZ}, 24, v{vL}")
A(f"""v_and_b32 v{t0}, 31, v{vL}
v_lshrrev_b32 v{t1}, 5, v{vL}
v_bfe_u32 v{t2}, v{vL}, 1, 3
v_xor_b32 v{t1}, v{t1}, v{t2}
v_lshlrev_b32 v{t1}, 4, v{t1}
v_lshlrev_b32 v{vFa}, 7, v{t0}
v_add_u32 v{t0}, s{sXS}, v{vFa}""")
vXq = [60, 61, 62, 63]
A(f"v_add_u32 v{t3}, s{sR}, v{vFa}")
for ks in range(4):
    A(f"v_xor_b32 v{t2}, {32*ks}, v{t1}\nv_add_u32 v{vXr[ks]}, v{t0}, v{t2}\nv_add_u32 v{vXq[ks]}, v{t3}, v{t2}")
A(f"""v_bfe_u32 v{t0}, v{vL}, 4, 1
v_mul_u32_u24 v{t0}, {RP}, v{t0}
v_lshrrev_b32 v{t1}, 5, v{vL}
v_bfe_u32 v{t2}, v{vL}, 2, 2
v_lshl_add_u32 v{t1}, v{t1}, 3, v{t2}
v_mul_u32_u24 v{t1}, 224, v{t1}
v_and_b32 v{t2}, 3, v{vL}
v_lshlrev_b32 v{t2}, 3, v{t2}
v_add3_u32 v{vT[0]}, v{t0}, v{t1}, v{t2}
v_add_u32 v{vT[1]}, {2*RP}, v{vT[0]}""")
A(f"""v_sub_u32 v{t0}, 7, v{vC8}
v_lshrrev_b32 v{t1}, 5, v{vL}
s_lshl_b32 s{sT1}, s{sW}, 1
v_add_u32 v{t1}, s{sT1}, v{t1}
v_and_b32 v{t2}, 3, v{vA8}
v_lshlrev_b32 v{t2}, 2, v{t2}
v_lshl_add_u32 v{t2}, v{t0}, 10, v{t2}
v_xor_b32 v{t3}, v{t1}, v{t0}
v_lshl_add_u32 v{vKhh}, v{t3}, 4, v{t2}
v_add_u32 v{vKhh}, {KS_K + 640}, v{vKhh}
v_add_u32 v{t3}, 1, v{t0}
v_and_b32 v{t3}, 7, v{t3}
v_xor_b32 v{t3}, v{t1}, v{t3}
v_lshl_add_u32 v{vKm}, v{t3}, 4, v{t2}
v_add_u32 v{vKm}, {KS_K + 1024}, v{vKm}
v_add_u32 v{vKv}, 8192, v{vKm}
v_add_u32 v{vHa}, s{sH3}, v{vL16}
v_subrev_u32 v{vHa}, {3*HP + 8}, v{vHa}
v_lshlrev_b32 v{vKs}, 4, v{vC8}
v_lshl_add_u32 v{t0}, v{vA8}, 12, v{vKs}""")
S.extend(park("yo", t0))
A(f"v_lshl_add_u32 v{vKs}, v{vA8}, 13, v{vKs}")
A(f"""v_bfe_u32 v{t0}, v{vL}, 4, 1
v_lshlrev_b32 v{t0}, 2, v{t0}
v_xor_b32 v{t0}, v{vC8}, v{t0}
v_lshlrev_b32 v{t0}, 4, v{t0}
v_lshl_add_u32 v{vWd}, v{vA8}, 10, v{t0}
v_add_u32 v{vWd+1}, 7168, v{vWd}
v_add_u32 v{vWd+2}, {2*7168}, v{vWd}
v_add_u32 v{vWd+3}, {3*7168}, v{vWd}""")
A(f"""v_and_b32 v{t0}, 31, v{vL}
v_min_u32 v{t0}, 23, v{t0}
v_lshrrev_b32 v{t1}, 5, v{vL}
v_mul_u32_u24 v{t1}, {HP}, v{t1}
v_lshl_add_u32 v{t0}, v{t0}, 4, v{t1}
s_mul_i32 s{sT1}, s{sW}, {2*HP}
s_add_u32 s{sT1}, s{sT1}, {HT}
v_add_u32 v{t0}, s{sT1}, v{t0}""")
S.extend(park("tz", t0))
A(f"""s_lshr_b32 s{sT0}, s{sW}, 1
s_mul_i32 s{sT0}, s{sT0}, {2*UP}
s_add_u32 s{sT0}, s{sT0}, {UA}
s_and_b32 s{sT1}, s{sW}, 1
s_lshl_b32 s{sT2}, s{sT1}, 11
s_add_u32 s{sT2}, s{sT2}, s{sT0}
v_add_u32 v{vUw}, s{sT2}, v{vL16}
s_mul_i32 s{sT2}, s{sT1}, {UP - 8}
s_add_u32 s{sT2}, s{sT2}, s{sT0}
s_add_u32 s{sT2}, s{sT2}, 4096
v_min_u32 v{vUz}, 14, v{vL}
v_lshlrev_b32 v{vUz}, 3, v{vUz}
v_add_u32 v{vUz}, s{sT2}, v{vUz}""")
A(f"""v_and_b32 v{t0}, 1, v{vL}
v_xor_b32 v{t0}, 1, v{t0}
v_mul_u32_u24 v{t0}, {UP}, v{t0}
v_bfe_u32 v{t1}, v{vL}, 1, 3
v_sub_u32 v{t1}, 7, v{t1}
v_lshrrev_b32 v{t2}, 4, v{vL}
v_add_u32 v{t1}, v{t1}, v{t2}
v_lshl_add_u32 v{t0}, v{t1}, 4, v{t0}
s_xor_b32 s{sT2}, s{sT1}, 1
s_lshl_b32 s{sT2}, s{sT2}, 8
s_add_u32 s{sT2}, s{sT2}, s{sT0}
v_add_u32 v{t0}, s{sT2}, v{t0}""")
S.extend(park("cb", t0))
A(f"""v_sub_u32 v{t0}, 63, v{vL}
v_lshlrev_b32 v{t0}, 3, v{t0}
s_xor_b32 s{sT2}, s{sT1}, 1
s_lshl_b32 s{sT2}, s{sT2}, 11
s_add_u32 s{sT2}, s{sT2}, s{sT0}
v_add_u32 v{t0}, s{sT2}, v{t0}""")
S.extend(park("cu", t0))
A(f"""v_and_b32 v{t0}, 3, v{vL}
v_mul_u32_u24 v{t0}, {HP}, v{t0}
v_bfe_u32 v{t1}, v{vL}, 2, 2
v_lshl_add_u32 v{t0}, v{t1}, 7, v{t0}
v_lshl_add_u32 v{t0}, v{t2}, 4, v{t0}
s_lshr_b32 s{sT0}, s{sW}, 1
s_mul_i32 s{sT0}, s{sT0}, {4*HP}
s_xor_b32 s{sT2}, s{sT1}, 1
s_lshl_b32 s{sT2}, s{sT2}, 8
s_add_u32 s{sT0}, s{sT0}, s{sT2}
s_add_u32 s{sT0}, s{sT0}, {HT}
v_add_u32 v{t0}, s{sT0}, v{t0}""")
S.extend(park("ca", t0))
A(f"""v_lshrrev_b32 v{t0}, 5, v{vL}
v_bfe_u32 v{t1}, v{vL}, 2, 2
v_lshl_add_u32 v{t0}, v{t0}, 2, v{t1}
v_lshlrev_b32 v{t0}, 7, v{t0}
v_bfe_u32 v{t1}, v{vL}, 3, 1
v_lshl_add_u32 v{t0}, v{t1}, 6, v{t0}
v_bfe_u32 v{t1}, v{vL}, 4, 1
v_lshl_add_u32 v{t0}, v{t1}, 5, v{t0}
v_and_b32 v{t1}, 3, v{vL}
v_lshl_add_u32 v{t0}, v{t1}, 3, v{t0}
v_add_u32 v{t1}, s{sR}, v{t0}""")
S.extend(park("td0", t1))
A(f"v_xor_b32 v{t0}, 64, v{t0}\nv_add_u32 v{t1}, s{sR}, v{t0}")
S.extend(park("td1", t1))
A(f"""v_bfe_u32 v{t0}, v{vL}, 2, 1
v_and_b32 v{t1}, 3, v{vL}
v_lshl_add_u32 v{t0}, v{t0}, 4, v{t1}
v_lshlrev_b32 v{t0}, 7, v{t0}""")
S.extend(park("fh", t0))
PP = 272; YP = 144; Y2P = 144
A(f"""v_and_b32 v{t0}, 31, v{vL}
v_mul_u32_u24 v{t0}, {PP}, v{t0}
v_lshrrev_b32 v{t1}, 5, v{vL}
v_lshl_add_u32 v{t0}, v{t1}, 4, v{t0}
v_add_u32 v{t0}, s{sR}, v{t0}""")
S.extend(park("pw", t0))
A(f"""s_lshl_b32 s{sT1}, s{sW}, 3
v_add_u32 v{t2}, s{sT1}, v{vA8}
v_mul_u32_u24 v{t0}, {PP}, v{t2}
v_lshl_add_u32 v{t0}, v{vC8}, 5, v{t0}""")
S.extend(park("pr", t0))
A(f"""v_mul_u32_u24 v{t0}, {Y2P}, v{t2}
v_lshl_add_u32 v{t0}, v{vC8}, 4, v{t0}
v_add_u32 v{t0}, {YS}, v{t0}""")
S.extend(park("y2r", t0))
A(f"""v_mul_u32_u24 v{t0}, {YP}, v{vA8}
v_lshl_add_u32 v{t0}, v{vC8}, 4, v{t0}
s_add_u32 s{sT1}, s{sR}, 17408
v_add_u32 v{t0}, s{sT1}, v{t0}""")
S.extend(park("y1w", t0))
A(f"""v_bfe_u32 v{t0}, v{vL}, 2, 2
v_mul_u32_u24 v{t0}, {YP}, v{t0}
v_and_b32 v{t1}, 3, v{vL}
v_lshl_add_u32 v{t0}, v{t1}, 3, v{t0}
v_lshrrev_b32 v{t1}, 4, v{vL}
v_lshl_add_u32 v{t0}, v{t1}, 5, v{t0}
v_add_u32 v{t0}, s{sT1}, v{t0}""")
S.extend(park("y1r", t0))
A(f"""v_mul_u32_u24 v{t0}, {Y2P}, v{vL}
s_lshl_b32 s{sT1}, s{sW}, 5
s_add_u32 s{sT1}, s{sT1}, {YS}
v_add_u32 v{t0}, s{sT1}, v{t0}""")
S.extend(park("y2w", t0))
A(f"""v_lshrrev_b32 v{t0}, 5, v{vL}
v_lshlrev_b32 v{t0}, 24, v{t0}
v_lshl_add_u32 v{t0}, v{vL}, 3, v{t0}""")
S.extend(park("sto", t0))
A(f"""s_lshl_b32 s{sT1}, s{sDT}, 18
s_lshl_b32 s{sT2}, s{sW}, 16
s_add_u32 s{sT1}, s{sT1}, s{sT2}
s_lshl_b32 s{sT2}, s{sTT}, 7
s_sub_u32 s{sKVS}, s{sT1}, s{sT2}
s_add_u32 s{sKVS}, s{sKVS}, {WS_KV + 2*1984}
s_lshr_b32 s{sKVF}, s{sT1}, 4
s_add_u32 s{sKVF}, s{sKVF}, s{sT2}
s_add_u32 s{sKVF}, s{sKVF}, {WS_KF}
s_lshl_b32 s{sSTW}, s{sFS}, 14
s_lshr_b32 s{sT0}, s{sXB}, 7
s_add_u32 s{sSTW}, s{sSTW}, s{sT0}
s_add_u32 s{sSTW}, s{sSTW}, {WS_ST}
s_lshl_b32 s{sWM1}, s{sB}, 1
s_lshr_b32 s{sT0}, s{sW}, 1
s_add_u32 s{sWM1}, s{sWM1}, s{sT0}
s_mul_i32 s{sWM1}, s{sWM1}, {28*128}
s_lshl_b32 s{sWM2}, s{sB}, 2
s_add_u32 s{sWM2}, s{sWM2}, s{sW}
s_mul_i32 s{sWM2}, s{sWM2}, {14*128}
s_lshr_b32 s{sPK}, s{sB}, 3
s_lshl_b32 s{sPK}, s{sPK}, 12
s_add_u32 s{sPK}, s{sPK}, {WS_KF}
s_lshl_b32 s{sPH}, s{sTT}, 12
s_lshl_b32 s{sT0}, s{sW}, 9
s_add_u32 s{sPH}, s{sPH}, s{sT0}
s_add_u32 s{sPH}, s{sPH}, {WS_HF}
s_lshr_b32 s{sPY}, s{sTT}, 4
s_lshl_b32 s{sPY}, s{sPY}, 16
s_lshl_b32 s{sT0}, s{sDT}, 13
s_add_u32 s{sPY}, s{sPY}, s{sT0}
s_lshl_b32 s{sT0}, s{sW}, 11
s_add_u32 s{sPY}, s{sPY}, s{sT0}
s_add_u32 s{sPY}, s{sPY}, {WS_YF}
s_mul_i32 s{sWDS}, s{sW}, {448*1024}
s_lshl_b32 s{sT0}, s{sDT}, 7
s_add_u32 s{sWDS}, s{sWDS}, s{sT0}
s_add_u32 s{sWDE}, s{sWDS}, {448*1024}
s_lshl_b32 s{sT0}, s{sRB}, 2
s_add_u32 s{sT0}, s{sT0}, s{sW}
s_mul_i32 s{sHB}, s{sT0}, {112*1024}
s_mul_i32 s{sT2}, s{sFS}, {7*1024}
s_add_u32 s{sHB}, s{sHB}, s{sT2}""")
vS1 = [120, 121]; vS2 = [122, 123]; vOne = 124
A(f"v_mov_b32 v{vOne}, 0x3f803f80")
if W0EARLY >= 2: S.extend(w_dma(1))
stamp("p")
def x_read(bt):
    return [WaitTag(vm=f"x{bt}")] + sum([L(f"ds_read_b128 {vr(XR+16*bt+4*ks)}, v{(vXr if bt & 2 else vXq)[ks]} offset:{(bt&1)*4096}") for ks in range(4)], [])
def x_stats(bt):
    o = []
    for r in range(16):
        x = XR + 16*bt + r
        c1 = "0" if (bt == 0 and r < 2) else f"v{vS1[r%2]}"
        c2 = "0" if (bt == 0 and r < 2) else f"v{vS2[r%2]}"
        o += L(f"v_dot2_f32_bf16 v{vS1[r%2]}, v{x}, v{vOne}, {c1}\nv_dot2_f32_bf16 v{vS2[r%2]}, v{x}, v{x}, {c2}")
    return o
S.extend(x_read(0))
S.extend(x_dma(1) + x_dma(2))
S.append(WaitTag(lgkm0=True))
stamp("p")
late = L(f"""s_add_u32 s{sTAG}, s{sTAG}, 1
s_lshl_b32 s{sHF}, s{sRB}, 2
s_add_u32 s{sHF}, s{sHF}, s{sW}
s_lshl_b32 s{sHF}, s{sHF}, 4
s_add_u32 s{sHF}, s{sHF}, s{sFS}
s_lshl_b32 s{sHF}, s{sHF}, 7
s_add_u32 s{sHF}, s{sHF}, {WS_HF}
s_mul_i32 s{sHS}, s{sTT}, {224*1024}
s_mul_i32 s{sT1}, s{sW}, {28*1024}
s_add_u32 s{sHS}, s{sHS}, s{sT1}
s_add_u32 s{sHE}, s{sHS}, {28*1024}
s_add_u32 s{sYB}, s{sK4}, {WS_Y}
s_and_b32 s{sYF}, s{sW}, 1
s_lshl_b32 s{sYF}, s{sYF}, 9
s_lshl_b32 s{sT1}, s{sB}, 1
s_add_u32 s{sYF}, s{sYF}, s{sT1}
s_lshr_b32 s{sT1}, s{sW}, 1
s_add_u32 s{sYF}, s{sYF}, s{sT1}
s_lshl_b32 s{sYF}, s{sYF}, 7
s_add_u32 s{sYF}, s{sYF}, {WS_YF}
v_mov_b32 v{vTg}, s{sTAG}""")
late2 = [L(f"""s_lshl_b32 s{sT1}, s{sD}, 16
s_and_b32 s{sT2}, s{sD}, s{sHI}
s_bitcmp1_b32 s{sW}, 1
s_cselect_b32 s{sD}, s{sT2}, s{sT1}""")]
if ROT2:
    late2.append(L(f"""s_mul_i32 s{sT1}, s{sDT}, 7
s_lshr_b32 s{sT1}, s{sT1}, 2
s_and_b32 s{sT2}, s{sTT}, 3
s_mul_i32 s{sT2}, s{sT2}, 7
s_lshr_b32 s{sT2}, s{sT2}, 1
s_add_u32 s{sT2}, s{sT1}, s{sT2}
s_sub_u32 s{sT1}, s{sT2}, 14
s_cmp_ge_u32 s{sT2}, 14
s_cselect_b32 s{sT2}, s{sT1}, s{sT2}
s_lshl_b32 s{sWDO}, s{sT2}, 15
s_add_u32 s{sWDO}, s{sWDO}, s{sWDS}
s_lshl_b32 s{sHO}, s{sT2}, 11
s_add_u32 s{sHO}, s{sHO}, s{sHS}"""))
else:
    late2.append(L(f"s_mov_b32 s{sWDO}, s{sWDS}\ns_mov_b32 s{sHO}, s{sHS}"))
KR = 64; VRW = 80; kf = 88; wf = 110
OP = [KR + 2*i for i in range(8)]
kvr = L(f"ds_read2_b32 {pr(KR)}, v{vKhh} offset0:0 offset1:32\nds_read_b32 v{KR+2}, v{vKhh} offset:256")
kvr += sum([L(f"ds_read2_b32 {pr(KR+4+2*i)}, v{vKm} offset0:{64*i} offset1:{64*i+32}") for i in range(4)], [])
kvr += sum([L(f"ds_read2_b32 {pr(VRW+2*i)}, v{vKv} offset0:{64*i} offset1:{64*i+32}") for i in range(4)], [])
wk = []
for c in range(2):
    for h in range(2):
        wk += L(f"v_lshlrev_b32 v{wf+4*h+c}, 16, v{vSK+2*c+h}\nv_and_b32 v{wf+4*h+2+c}, s{sHI}, v{vSK+2*c+h}")
ksrc = [KR, KR+1, KR+2] + list(range(KR+4, KR+12))
for i in range(11):
    wk += L(f"v_lshlrev_b32 v{kf+2*i}, 16, v{ksrc[i]}\nv_and_b32 v{kf+2*i+1}, s{sHI}, v{ksrc[i]}")
for i in range(8):
    wk += L(f"v_pk_mul_f32 {pr(OP[i])}, {pr(kf+2*(i+3))}, {pr(wf)}")
for tap in range(1, 4):
    for i in range(8):
        wk += L(f"v_pk_fma_f32 {pr(OP[i])}, {pr(kf+2*(i+3-tap))}, {pr(wf+2*tap)}, {pr(OP[i])}")
for i in range(8):
    wk += L(f"v_lshlrev_b32 v{kf+2*i}, 16, v{VRW+i}\nv_and_b32 v{kf+2*i+1}, s{sHI}, v{VRW+i}")
for i in range(8):
    wk += L(f"v_pk_mul_f32 {pr(OP[i])}, {pr(OP[i])}, {pr(kf+2*i)}")
for c in range(2):
    for m in range(4):
        wk += L(f"v_cvt_pk_bf16_f32 v{vKo+4*c+m}, v{OP[7-2*m]+c}, v{OP[6-2*m]+c}")
KVBLOCK = wk
S.extend(meter(late + x_stats(0), x_dma(3) + x_dma(4)))
for g_ in late2: S.extend(g_)
S.extend(x_read(1) + x_read(2))
S.append(WaitTag(vm="kv"))
A("s_barrier")
S.extend(kvr)
S.extend(meter(x_stats(1), [WaitRegs([vr(XR+16, 16)])] + x_dma(5), first=2))
S.extend(x_read(3))
S.extend(meter(KVBLOCK[:48], [WaitRegs([vr(XR+32, 16)])] + x_dma(6), first=2))
S.extend(x_read(4))
S.extend(meter(KVBLOCK[48:], [WaitRegs([vr(XR+48, 16)])] + x_dma(7), first=2))
stamp("p")
rest = []
if W0EARLY < 1: rest += w_dma(0)
if W0EARLY < 2: rest += w_dma(1)
S.extend(meter(x_stats(2) + x_read(5) + x_stats(3) + x_read(6) + x_stats(4) + x_read(7) + x_stats(5) + x_stats(6), rest))
A(f"""s_lshr_b32 s{sSTR}, s{sO0}, 10
s_lshl_b32 s{sSTR}, s{sSTR}, 3
s_lshl_b32 s{sT1}, s{sW}, 16
s_add_u32 s{sSTR}, s{sSTR}, s{sT1}
s_add_u32 s{sSTR}, s{sSTR}, {WS_ST}
s_lshl_b32 s{sYT}, s{sDT}, 18
s_add_u32 s{sYT}, s{sYT}, s{sT1}
s_lshl_b32 s{sT1}, s{sTT}, 7
s_add_u32 s{sYT}, s{sYT}, s{sT1}
s_add_u32 s{sYT}, s{sYT}, {WS_Y}""")
def rnd(r): return f"v_cvt_pk_bf16_f32 v{r}, v{r}, v{r}\nv_lshlrev_b32 v{r}, 16, v{r}"
fin = x_stats(7) + L(f"""v_add_f32 v16, v{vS1[0]}, v{vS1[1]}
v_add_f32 v20, v{vS2[0]}, v{vS2[1]}
v_mov_b32 v17, v16
v_mov_b32 v21, v20
v_permlane32_swap_b32 v16, v17
v_permlane32_swap_b32 v20, v21
v_add_f32 v16, v16, v17
v_add_f32 v20, v20, v21
v_mul_f32 v16, 0x3b000000, v16
v_mul_f32 v20, 0x3b000000, v20
v_fma_f32 v20, -v16, v16, v20
v_max_f32 v20, 0, v20
{rnd(20)}
{rnd(16)}
v_add_f32 v20, 0x3727c5ac, v20
{rnd(20)}
v_sqrt_f32 v20, v20
{rnd(20)}
v_rcp_f32 v{vRs}, v20
v_mul_f32 v{vMr}, v16, v{vRs}
v_sub_f32 v{vMr}, 0, v{vMr}""")
def norm(kk):
    o = []
    for hlf in range(2):
        t = 16 + 4 * hlf
        for q in range(2):
            x = XR + 4*kk + 2*hlf + q
            o += L(f"v_lshlrev_b32 v{t+2*q}, 16, v{x}\nv_and_b32 v{t+2*q+1}, s{sHI}, v{x}")
        for q in range(4):
            o += L(f"v_fma_f32 v{t+q}, v{t+q}, v{vRs}, v{vMr}")
        for q in range(2):
            x = XR + 4*kk + 2*hlf + q
            o += L(f"v_cvt_pk_bf16_f32 v{x}, v{t+2*q}, v{t+2*q+1}")
    return o

NB = opt('nb', 14)
order = []
for s in range(7):
    for ks in range(4):
        for ti in range(7): order.append((s, ks, ti))
TORD = [5, 6, 0, 1, 2, 3, 4]
for ti in TORD:
    for ks in range(4): order.append((7, ks, ti))
main = []
seen = set()
for i, (s, ks, ti) in enumerate(order):
    kk = 4*s + ks
    c = "0" if ti not in seen else acc(ti)
    seen.add(ti)
    main.append(Ins(f"v_mfma_f32_32x32x16_bf16 {acc(ti)}, {ar(4*(i % NB))}, {vr(XR+4*kk)}, {c}"))
def frag_reads(i):
    s, ks, ti = order[i]
    b = 4 * (i % NB)
    off = sig(s)*8192 + 16*(ks & 1)*224 + 32*ti
    return L(f"ds_read_b64_tr_b16 a[{b}:{b+1}], v{vT[ks>>1]} offset:{off}\nds_read_b64_tr_b16 a[{b+2}:{b+3}], v{vT[ks>>1]} offset:{off+4*224}")
SC = Sched(224)
pre = []
LA = opt('la', 7)
def put(g, items):
    if g < 0: pre.extend(items)
    else: SC.pin(g, items)
def bar(s): return 28*s - LA - 1
def wd_dma(nks, ldsoff, tag):
    o = []
    for n in range(2*nks):
        if n % 4 == 0: o += L(f"s_add_u32 m0, s{sR}, {ldsoff + 1024*n}")
        o += L(f"buffer_load_dwordx4 v{vWd + (n % 4)}, {srd(WD_)}, s{sWDO} offen offset:{1024*(n%4)}{NTD} lds", tag=tag)
        if n % 4 == 3:
            o += L(f"""s_add_u32 s{sWDO}, s{sWDO}, {32*1024}
s_cmp_eq_u32 s{sWDO}, s{sWDE}
s_cselect_b32 s{sWDO}, s{sWDS}, s{sWDO}""")
    return o
KVB = -1
for s in range(9):
    g0 = bar(s)
    tags = ([f"w{s}"] if s < 8 else []) + (["kv"] if s == KVB else [])
    put(g0, [WaitTag(vm=tags, lgkm0=True)] + L("s_barrier") + stampL("g"))
    if s == 0:
        for n in range(LA + 1): put(-1, frag_reads(n))
        put(-1, fin)
        for kk in range(NPRE): put(-1, norm(kk))
        for n in range(LA + 1, 28): put(((n - LA - 1) * (24 - LA)) // (27 - LA), frag_reads(n))
    elif s < 8:
        for n in range(28):
            put(g0 + (n * 24) // 28, frag_reads(28*s + n))
WG_ = opt("wgrp", 3)
waits = {}
for i in range(1, 224, WG_):
    waits[i - 1] = WaitRegs([ar(4*(j % NB)) for j in range(i, min(i + WG_, 224)) if j // 28 == i // 28])
vq = []; vrel = []; vdead = []
def vstream(items, rel, dead):
    for grp in groups(items): vq.append(grp); vrel.append(rel); vdead.append(dead)
def vone(items, rel, dead=None): vq.append(items); vrel.append(rel); vdead.append(rel if dead is None else dead)
vstream(w_dma(2), 0, bar(1) - 6)
vone(L(f"buffer_store_dwordx4 {vr(vKo)}, v{vKs}, {srd(WS_)}, s{sKVS} offen sc1", tag="kvst"), 0, bar(1) - 4)
vone(L(f"s_add_u32 s{sKVS}, s{sKVS}, 4096") + L(f"buffer_store_dwordx4 {vr(vKo+4)}, v{vKs}, {srd(WS_)}, s{sKVS} offen sc1", tag="kvst"), 0, bar(1) - 2)
if WARM: vone(L(f"v_min_u32 v1, {27*128}, v{vFa}\nbuffer_load_dword v2, v1, {srd(W_)}, s{sWM1} offen"), 0, bar(1))
vstream(w_dma(3), bar(1) + 1, bar(2) - 4)
vone(unpark("sto", 3) + L(f"buffer_store_dwordx2 v[{vRs}:{vMr}], v3, {srd(WS_)}, s{sSTW} offen sc1", tag="stst"), bar(1) + 1, bar(2) - 2)
KVPUB = opt("kvpub", bar(2) + 1)
vone([WaitTag(vm="kvst")] + flag_store(sKVF), KVPUB)
vstream(w_dma(4), bar(2) + 1, bar(3) - 4)
vstream(L(f"""s_mov_b32 m0, s{sH3}
buffer_load_dwordx4 v{vL16}, {srd(SSM_)}, s{sK4} offen{NTK} lds
buffer_load_dwordx4 v{vL16}, {srd(SSM_)}, s{sK4} offen offset:1024{NTK} lds""", tag="ssm"), bar(2) + 1, bar(3))
vstream(w_dma(5), bar(3) + 1, bar(4) - 2)
if WARM: vone(L(f"v_min_u32 v1, {13*128}, v{vFa}\nbuffer_load_dword v4, v1, {srd(WD_)}, s{sWM2} offen"), bar(3) + 1, bar(4))
vstream(w_dma(6), bar(4) + 1, bar(5) - 2)
KPI = opt("kpi", bar(5))
vone(poll_issue(vFl, vFa, sPK), KPI)
vstream(w_dma(7), bar(5) + 1, bar(6) - 4)
KPC = opt("kpc", bar(6) - 2)
vone(poll_check(vFl, vFa, sPK) + L(f"""s_add_u32 s{sK4}, s{sK4}, {WS_KV}
buffer_load_dwordx4 {vr(vKo)}, v{vL16}, {srd(WS_)}, s{sK4} offen sc1"""), KPC)
vone(L(f"buffer_load_dwordx4 {vr(vKo+4)}, v{vL16}, {srd(WS_)}, s{sK4} offen offset:1024 sc1"), KPC, KPC + 2)
vstream(wd_dma(4, 0, "wd0a"), bar(6) + 1, bar(7) - 1)
vstream(wd_dma(4, 8192, "wd0b"), bar(7) + 1, bar(8) - 1)
vstream(wd_dma(4, 16384, "wd0c"), bar(8) + 1, 223)
SC.flex(vq, vrel, vdead, pace=opt("pace", 3))
put(30, unpark("tz", 132) + L("v_mov_b32 v128, 0\nv_mov_b32 v129, 0"))
put(31, L("v_mov_b32 v130, 0\nv_mov_b32 v131, 0\nds_write_b128 v132, v[128:131]"))
put(bar(5) - 1, [WaitTag(vm="ssm")])
hd = [128, 134]
tb = []
for n in range(2):
    tb += L(f"ds_read_b64 v[{hd[n]}:{hd[n]+1}], v{vHa} offset:{3*HP + 1024*n}")
    tb += L(f"ds_read_b128 {vr(hd[n]+2)}, v{vHa} offset:{3*HP + 1024*n + 8}")
put(bar(5) + 1, tb)
tbu = []
for n in range(2):
    e0, e1, d0, d1, d2, d3 = range(hd[n], hd[n] + 6)
    o = 140 + 12 * n
    blk = [L(f"""v_alignbit_b32 v{o}, v{e1}, v{e0}, 16
v_alignbit_b32 v{o+1}, v{d0}, v{e1}, 16
v_alignbit_b32 v{o+2}, v{d1}, v{d0}, 16
v_alignbit_b32 v{o+3}, v{d2}, v{d1}, 16"""), L(f"""v_mov_b32 v{o+4}, v{e1}
v_mov_b32 v{o+5}, v{d0}
v_mov_b32 v{o+6}, v{d1}
v_mov_b32 v{o+7}, v{d2}"""), L(f"""v_alignbit_b32 v{o+8}, v{d0}, v{e1}, 16
v_alignbit_b32 v{o+9}, v{d1}, v{d0}, 16
v_alignbit_b32 v{o+10}, v{d2}, v{d1}, 16
v_alignbit_b32 v{o+11}, v{d3}, v{d2}, 16""")]
    for s in range(3):
        tbu += [[x] for x in blk[s]] + [L(f"ds_write_b128 v{vHa}, {vr(o+4*s)} offset:{s*HP + 1024*n + 8}")]
tbu += [L("v_mov_b32 v164, 0"), L("v_mov_b32 v165, 0"), L(f"ds_write_b64 v{vUz}, v[164:165]")]
G0 = bar(5) + 5
SC.flex(tbu, [G0 + (i * 50) // len(tbu) for i in range(len(tbu))], [G0 + 2 + (i * 50) // len(tbu) for i in range(len(tbu))])
uw = []
for n in range(2):
    uw += L(f"""ds_write_b128 v{vUw}, {vr(vKo+4*n)} offset:{1024*n}
ds_write_b64 v{vUw}, v[{vKo+4*n}:{vKo+1+4*n}] offset:{1024*n + UP - 8}
ds_write_b64 v{vUw}, v[{vKo+2+4*n}:{vKo+3+4*n}] offset:{1024*n + UP}""")
GU = bar(7) + 3
SC.flex([[x] for x in uw], [GU + 3*i for i in range(6)], [GU + 3*i + 1 for i in range(6)])
first_use = {}
for i, (s, ks, ti) in enumerate(order): first_use.setdefault(4*s+ks, i)
nu = []; nd = []
for kk in range(NPRE, 32):
    dl = min(first_use[kk] - 2, 194 - (31 - kk) * 5)
    for op in norm(kk): nu.append([op]); nd.append(dl)
if not opt('x_nonorm', 0): SC.flex(nu, 0, nd)
def epi1(ti):
    o = []
    if ti < 5:
        b = ACC[ti]
    else:
        b = 176 + 16*(ti-5)
        for r in range(16): o += L(f"v_accvgpr_read_b32 v{b+r}, a{224+16*(ti-5)+r}")
    for r in range(8): o += L(f"v_max_f32 v{b+r}, 0, v{b+r}")
    for r in range(8): o += L(f"v_mul_f32 v{b+r}, v{b+r}, v{b+8+r}")
    for m in range(4): o += L(f"v_cvt_pk_bf16_f32 v{b+8+m}, v{b+2*m}, v{b+2*m+1}")
    so = sHB if ti < 4 else sT2
    o += L(f"buffer_store_dwordx4 {vr(b+8)}, v{vL16}, {srd(WS_)}, s{so} offen offset:{1024*(ti&3)} sc1", tag="hst")
    return o
pre += L(f"s_add_u32 s{sT2}, s{sHB}, 4096")
for g, wv in waits.items(): SC.pin(g, [wv])
fill, bud = SC.solve()
print("gemm1 budget", bud, file=sys.stderr)
for g, wv in waits.items():
    fill[g].remove(wv); fill[g].append(wv)
def cnt(f, g): return len([x for x in f[g] if not (isinstance(x, Ins) and x.kind == 'label')])
tail = []
g = 0
for n, ti in enumerate(TORD):
    g = max(g, 196 + 4*n + 3 + 2)
    for op in epi1(ti):
        while g <= 223 and cnt(fill, g) >= 6: g += 1
        if g <= 223: fill[g].append(op)
        else: tail.append(op)
S.extend(pre)
stamp()
S.extend(weave(main, fill))
stamp(); stamp("g")

vCa, vCb, vCu = 1, 2, 3
vTd = [4, 5]
vY8, vXc = 6, 7
S.extend(unpark("ca", vCa) + unpark("cb", vCb) + unpark("cu", vCu) + unpark("td0", vTd[0]) + unpark("td1", vTd[1]) + unpark("fh", vFa))
FB = [192, 128]
CA = 8
CQ = [8, 12, 16, 20, 48, 52, 56, 60]
def creads(z, which):
    r_ = []
    b = FB[z & 1]
    for r in range(8):
        if 'A' in which: r_ += L(f"ds_read_b128 {vr(b+4*r)}, v{vCa} offset:{192 + 512*r - 64*z}")
        if 'B' in which: r_ += L(f"ds_read_b128 {vr(b+32+4*r)}, v{vCb} offset:{3776 - 512*r - 64*z}")
    return r_
def wd_reads(ks0, nks, ldsoff):
    o = []
    for k in range(nks):
        for dt in range(2):
            b = 8*(ks0+k) + 4*dt
            off = ldsoff + 2048*k
            o += L(f"ds_read_b64_tr_b16 a[{b}:{b+1}], v{vTd[dt]} offset:{off}\nds_read_b64_tr_b16 a[{b+2}:{b+3}], v{vTd[dt]} offset:{off+1024}")
    return o
S.extend(creads(0, "AB"))
S.extend(tail)
stamp(); stamp("c")
HRING = list(range(64, 128, 4)) + list(range(192, 256, 4)) + [48, 52, 56, 60]
NH = len(HRING)
NHE = 16
AC2 = 128
def h_load(n):
    tt, ks = n // 28, n % 28
    o = L(f"buffer_load_dwordx4 {vr(HRING[n % NH])}, v{vL16}, {srd(WS_)}, s{sHO} offen offset:{1024*(ks%2)} sc1")
    if ks % 2 == 1:
        o += L(f"""s_add_u32 s{sHO}, s{sHO}, 2048
s_cmp_eq_u32 s{sHO}, s{sHE}
s_cselect_b32 s{sHO}, s{sHS}, s{sHO}""")
    if n == 27: o += L(f"s_add_u32 s{sHO}, s{sHO}, {112*1024}\ns_add_u32 s{sHS}, s{sHS}, {112*1024}\ns_add_u32 s{sHE}, s{sHE}, {112*1024}")
    return o
mm = []
pairs = sorted([(r, q - r, q) for q in range(8) for r in range(q + 1)], key=lambda x: (max(x[0], x[1]), x[2]))
C2 = Sched(144)
seenq = set()
for z in range(4):
    b = FB[z & 1]
    for r, p, q in pairs:
        c = vr(CQ[q]) if q in seenq else "0"
        seenq.add(q)
        mm.append(Ins(f"v_mfma_f32_16x16x32_bf16 {vr(CQ[q])}, {vr(b+4*r)}, {vr(b+32+4*p)}, {c}"))
    if z < 3:
        for n, it in enumerate(creads(z + 1, "AB")): C2.pin(36*z + 1 + 2*n, [it])
cq = []; crel = []
def cadd(items, rel, dma=False):
    for grp in (groups(items) if dma else [[x] for x in items]): cq.append(grp); crel.append(rel)
HPUB = opt("hpub", 30)
HPI = opt("hpi", 84)
HPC = opt("hpc", 112)
cadd([WaitTag(vm="wd0a")] + wd_reads(0, 4, 0) + [WaitTag(vm="wd0b")] + wd_reads(4, 4, 8192), 0)
cadd([WaitRegs([ar(0, 32)])] + wd_dma(4, 0, "wd1a"), 0, True)
cq.append(stampL("c") + [WaitTag(vm="hst")] + flag_store(sHF) + stampL("c")); crel.append(HPUB)
cadd([WaitTag(vm="wd0c")] + wd_reads(8, 4, 16384), 0)
cadd([WaitRegs([ar(32, 32)])] + wd_dma(4, 8192, "wd1b"), 0, True)
cadd([WaitRegs([ar(64, 32)])] + wd_dma(4, 16384, "wd1c"), 0, True)
cadd([WaitTag(vm="wd1a")] + wd_reads(12, 4, 0), 0)
cq.append(poll_issue(vFl, vFa, sPH)); crel.append(HPI)
cadd([WaitRegs([ar(96, 32)])] + wd_dma(4, 0, "wd2"), 0, True)
cq.append(stampL("c") + poll_check(vFl, vFa, sPH) + stampL("c")); crel.append(HPC)
NHC = opt("nhc", 8)
for n in range(NHC): cq.append(h_load(n)); crel.append(HPC)
C2.flex(cq, crel, 143)
f2, bud = C2.solve(lo=1.0, hi=4.0, free=1.5)
print("conv budget", bud, file=sys.stderr)
S.extend(weave(mm, f2))
stamp(); stamp("c")

mm = []
for tt in range(2):
    for ks in range(28):
        n = 28*tt + ks
        for dt in range(2):
            a = vr(AC2 + 32*tt + 16*dt, 16)
            c = "0" if ks == 0 else a
            mm.append(Ins(f"v_mfma_f32_32x32x16_bf16 {a}, {ar(8*ks+4*dt)}, {vr(HRING[n % NH])}, {c}"))
pre2 = []
for n in range(NHC, NHE): pre2 += h_load(n)
S.extend(pre2)
A(f"""s_lshl_b32 s{sT1}, s{sW}, 12
s_add_u32 s{sT1}, s{sT1}, {XCH}
v_add_u32 v{vXc}, s{sT1}, v{vL16}
v_lshlrev_b32 v{vY8}, 3, v{vL}""")
for n in range(4): A(f"ds_read_b64 {pr(40+2*n)}, v{vCu} offset:{4088 - 504 - 2048 - 512*n}")
S.append(WaitTag(lgkm0=True))
A("s_barrier")
A(f"s_bitcmp1_b32 s{sW}, 0\ns_cbranch_scc1 L_xB")
S.append(State('save', 'x'))
for n in range(4): A(f"ds_write_b128 v{vXc}, {vr(CQ[4+n])} offset:{1024*n}")
A("s_branch L_xE\nL_xB:")
S.append(State('save', 'xA'))
S.append(State('restore', 'x'))
for n in range(4): A(f"ds_write_b128 v{vXc}, {vr(CQ[n])} offset:{1024*n}")
S.append(WaitTag(lgkm0=True))
for n in range(16): A(f"v_mov_b32 v{8+n}, v{48+n}")
A("L_xE:")
S.append(State('restore', 'xA'))
A(f"v_xor_b32 v{vXc}, 0x1000, v{vXc}")
G2 = Sched(112)
hq = []; hrel = []
for n in range(NHE, 56):
    hq.append(h_load(n))
    hrel.append(max(0, 2*(n - NH) + 2, (12 if HRING[n % NH] < 64 else 0)))
G2.flex(hq, hrel, [max(r, (n - NHE)) + 2 for n, r in zip(range(NHE, 56), hrel)], pace=1)
XG = 4
G2.pin(XG, [WaitTag(lgkm0=True)] + L("s_barrier"))
G2.pin(XG + 1, sum([L(f"ds_read_b128 {vr(48+4*n)}, v{vXc} offset:{1024*n}") for n in range(4)], []))
cf = []
for n in range(4):
    a = 8 + 4*n; t = 40 + 2*n
    cf += L(f"""v_and_b32 v24, s{sHI}, v{t+1}
v_lshlrev_b32 v25, 16, v{t+1}
v_and_b32 v26, s{sHI}, v{t}
v_lshlrev_b32 v27, 16, v{t}""")
    for r in range(4): cf += L(f"v_fma_f32 v{a+r}, s{sD}, v{24+r}, v{a+r}")
cf2 = []
for n in range(4):
    a = 8 + 4*n; t = 40 + 2*n
    for r in range(4): cf2 += L(f"v_add_f32 v{a+r}, v{a+r}, v{48+4*n+r}")
    cf2 += L(f"v_cvt_pk_bf16_f32 v{t}, v{a}, v{a+1}\nv_cvt_pk_bf16_f32 v{t+1}, v{a+2}, v{a+3}")
    cf2 += L(f"buffer_store_dwordx2 {pr(t)}, v{vY8}, {srd(WS_)}, s{sYB} offen offset:{512*n} sc1", tag="yst")
G2.flex([[x] for x in cf + cf2], [0] * len(cf) + [XG + 3] * len(cf2), 11)
vPW, vPR0, vPR1, vY2, vXo = 8, 9, 10, 11, 12
XT = 16
gq = []; grel = []; gdead = []
def gadd(items, rel, unit=False, dead=111):
    if unit: gq.append(items); grel.append(rel); gdead.append(dead)
    else:
        for x in items: gq.append([x]); grel.append(rel); gdead.append(dead)
gadd([WaitTag(vm="wd1b")] + wd_reads(16, 4, 8192), 12, dead=27)
gadd([WaitTag(vm="wd1c")] + wd_reads(20, 4, 16384), 12, dead=35)
gadd(unpark("pw", vPW) + unpark("pr", vPR0) + unpark("y2r", vY2) + unpark("xo", vXo) + unpark("yo", 7) + unpark("y1w", 1) + unpark("y1r", 2) + unpark("y2w", 3), 12)
gadd([WaitTag(vm="wd2")] + wd_reads(24, 4, 0), 12, dead=43)
YPUB = opt("ypub", 36)
gadd(stampL("c") + [WaitTag(vm="yst")] + flag_store(sYF) + stampL("c"), YPUB, True)
gadd(L(f"""v_add_u32 v{vPR1}, {2*RP}, v{vPR0}
s_add_u32 s{sT2}, s{sO0}, 32768
buffer_load_dwordx4 {vr(XT)}, v{vXo}, {srd(X_)}, s{sO0} offen
buffer_load_dwordx4 {vr(XT+4)}, v{vXo}, {srd(X_)}, s{sT2} offen
v_lshrrev_b32 v15, 3, v{vL}
v_lshlrev_b32 v15, 3, v15
buffer_load_dwordx2 {pr(XT+8)}, v15, {srd(WS_)}, s{sSTR} offen sc1
buffer_load_dwordx2 {pr(XT+10)}, v15, {srd(WS_)}, s{sSTR} offen offset:256 sc1
v_and_b32 v{vFa}, 15, v{vL}
v_lshlrev_b32 v{vFa}, 7, v{vFa}"""), YPUB)
def pwrites(tt):
    o = []
    for dt in range(2):
        for m in range(4):
            o += L(f"ds_write_b128 v{vPW}, {vr(AC2 + 32*tt + 16*dt + 4*m)} offset:{32*tt*PP + 128*dt + 32*m}")
    return o
YPI = opt("ypi", 58)
gadd(poll_issue(vFl, vFa, sPY), YPI, True)
for n, it in enumerate(pwrites(0)): gadd([it], 59 + 2*n)
YCK = opt("yck", 78)
gadd(stampL("c") + poll_check(vFl, vFa, sPY) + stampL("c") + L(f"buffer_load_dwordx4 v[40:43], v7, {srd(WS_)}, s{sYT} offen sc1"), YCK, True)
gadd(L(f"s_add_u32 s{sYT}, s{sYT}, 32768\nbuffer_load_dwordx4 v[44:47], v7, {srd(WS_)}, s{sYT} offen sc1"), YCK, True)
def fin_pre(p, t):
    o = []
    xs = XT + 4*p; rs = XT + 8 + 2*p
    for m in range(4):
        o += L(f"v_lshlrev_b32 v{t+2*m}, 16, v{xs+m}\nv_and_b32 v{t+2*m+1}, s{sHI}, v{xs+m}")
    for e in range(8): o += L(f"v_fma_f32 v{t+8+e}, v{t+e}, v{rs}, v{rs+1}")
    return o
FT = [128, 144]
gadd([WaitTag(lgkm0=True)] + fin_pre(0, FT[0]) + fin_pre(1, FT[1]), YCK)
YW = opt("yw", 100)
gadd(L(f"ds_write_b128 v1, v[40:43]\nds_write_b128 v1, v[44:47] offset:{8*YP}"), YW)
gadd(sum([L(f"ds_read_b64_tr_b16 v[{40+2*j}:{41+2*j}], v2 offset:{4*j*YP}") for j in range(4)], []), YW + 2)
gadd(L(f"ds_write_b128 v3, v[40:43]\nds_write_b128 v3, v[44:47] offset:16"), YW + 6)
G2.flex(gq, grel, gdead)
f3, bud = G2.solve(lo=5.0, hi=6.1, free=6)
print("gemm2 budget", bud, file=sys.stderr)
S.extend(weave(mm, f3))
stamp(); stamp("c")
def fin_reads(p, b, ys):
    o = []
    for w in range(4):
        for hh in range(2):
            o += L(f"ds_read_b128 {vr(b + 8*w + 4*hh)}, v{vPR0 + (w>>1)} offset:{(w&1)*RP + 32*p*PP + 16*hh}")
    o += L(f"ds_read_b128 {vr(ys)}, v{vY2} offset:{32*p*Y2P}")
    return o
def fin_math(p, b, ys, t):
    o = []
    u = 192 + 8*p
    for m in range(4):
        o += L(f"v_lshlrev_b32 v{u+2*m}, 16, v{ys+m}\nv_and_b32 v{u+2*m+1}, s{sHI}, v{ys+m}")
    for e in range(0, 8, 2): o += L(f"v_pk_fma_f32 {pr(t+e)}, {pr(t+8+e)}, {pr(u+e)}, {pr(t+e)}")
    for e in range(0, 8, 2):
        o += L(f"v_pk_add_f32 {pr(b+e)}, {pr(b+e)}, {pr(b+8+e)}")
    for e in range(0, 8, 2):
        o += L(f"v_pk_add_f32 {pr(b+16+e)}, {pr(b+16+e)}, {pr(b+24+e)}")
    for e in range(0, 8, 2): o += L(f"v_pk_add_f32 {pr(b+e)}, {pr(b+e)}, {pr(t+e)}")
    for e in range(0, 8, 2): o += L(f"v_pk_add_f32 {pr(b+e)}, {pr(b+e)}, {pr(b+16+e)}")
    for m in range(4): o += L(f"v_cvt_pk_bf16_f32 v{b+8+m}, v{b+2*m}, v{b+2*m+1}")
    o += L(f"buffer_store_dwordx4 {vr(b+8)}, v{vXo}, {srd(OUT_)}, s{sO0 if p == 0 else sT2} offen")
    return o
S.append(WaitTag(lgkm0=True))
A("s_barrier")
S.extend(L(f"ds_read_b128 {vr(112)}, v{vY2} offset:0") + fin_reads(0, 48, 112)[:-1] + L(f"ds_read_b128 {vr(116)}, v{vY2} offset:{32*Y2P}"))
S.extend(pwrites(1))
S.extend(fin_math(0, 48, 112, FT[0]))
S.append(WaitTag(lgkm0=True))
A("s_barrier")
S.extend(fin_reads(1, 80, 116)[:-1])
S.extend(fin_math(1, 80, 116, FT[1]))
A(f"""s_or_b32 s{sT1}, s{sB}, s{sW}
s_cmp_lg_u32 s{sT1}, 0
s_cbranch_scc1 L_noep
v_and_b32 v1, 31, v{vL}
v_lshrrev_b32 v2, 5, v{vL}
v_lshlrev_b32 v1, 7, v1
v_lshl_add_u32 v1, v2, 14, v1
s_mov_b32 s4, {WS_KF}
s_mov_b32 s5, {WS_KF + 0x8000}
s_mov_b32 s6, {WS_KF + 0x10000}
s_mov_b32 s7, {WS_KF + 0x18000}
s_mov_b32 s{sCNT}, 0x40000
L_ep:
buffer_load_dword v4, v1, {srd(WS_)}, s4 offen sc1
buffer_load_dword v5, v1, {srd(WS_)}, s5 offen sc1
buffer_load_dword v6, v1, {srd(WS_)}, s6 offen sc1
buffer_load_dword v7, v1, {srd(WS_)}, s7 offen sc1
s_waitcnt vmcnt(0)
v_xor_b32 v4, s{sTAG}, v4
v_xor_b32 v5, s{sTAG}, v5
v_xor_b32 v6, s{sTAG}, v6
v_xor_b32 v7, s{sTAG}, v7
v_or_b32 v4, v4, v5
v_or3_b32 v4, v4, v6, v7
v_cmp_ne_u32 vcc, 0, v4
s_sub_u32 s{sCNT}, s{sCNT}, 1
s_cbranch_scc1 L_epw
s_cbranch_vccnz L_ep
L_epw:
s_mov_b32 s{sT1}, {WS_EP}
buffer_store_dword v{vTg}, v{vZ}, {srd(WS_)}, s{sT1} offen sc1
L_noep:""")
if PROF:
    S.append(WaitTag(vm0=True))
    stamp("end")
    A(f"s_memrealtime s[0:1]")
    S.append(WaitTag(lgkm0=True))
    for n in range(13): A(f"v_mov_b32 v{16+n}, " + (f"s{STP[n]}" if n < nstamp else "0"))
    A(f"v_mov_b32 v29, s{sRT}\nv_mov_b32 v30, s0")
    A(f"s_getreg_b32 s{sT1}, hwreg(HW_REG_XCC_ID)\nv_mov_b32 v31, s{sT1}")
    A(f"""s_lshl_b32 s{sT0}, s{sB}, 2
s_add_u32 s{sT0}, s{sT0}, s{sW}
s_lshl_b32 s{sT0}, s{sT0}, 6
s_add_u32 s{sT0}, s{sT0}, {WS_PR}
v_mov_b32 v1, 0
buffer_store_dwordx4 v[16:19], v1, {srd(WS_)}, s{sT0} offen
buffer_store_dwordx4 v[20:23], v1, {srd(WS_)}, s{sT0} offen offset:16
buffer_store_dwordx4 v[24:27], v1, {srd(WS_)}, s{sT0} offen offset:32
buffer_store_dwordx4 v[28:31], v1, {srd(WS_)}, s{sT0} offen offset:48""")
A("L_end:\ns_endpgm")

body = finalize(S, verbose=False)
hdr = open("cdna_kernels/" + NAME + ".s.ref").read().split("; Override launch geometry")[0]
txt = hdr + f"; @launch grid=(256,1,1) block=(256,1,1) lds={LDS_SIZE}\n"
txt += f""".amdgcn_target "amdgcn-amd-amdhsa--gfx950"
.text
.globl {NAME}_kernel
.p2align 8
.type {NAME}_kernel,@function
{NAME}_kernel:
"""
code = ""
for i in body + SLOW:
    code += ("" if i.kind == 'label' else "    ") + i.text + "\n"
    if i.op == "s_getpc_b64": code += "L_pc:\n"
code = code.replace("CODE_LAST", "L_end-L_pc-128")
txt += code
txt += f""".section .rodata,"a"
.p2align 6
.amdhsa_kernel {NAME}_kernel
  .amdhsa_next_free_vgpr 512
  .amdhsa_next_free_sgpr 102
  .amdhsa_accum_offset 256
  .amdhsa_group_segment_fixed_size 0
  .amdhsa_kernarg_size 104
  .amdhsa_user_sgpr_count 2
  .amdhsa_user_sgpr_kernarg_segment_ptr 1
  .amdhsa_system_sgpr_workgroup_id_x 1
  .amdhsa_float_denorm_mode_32 3
  .amdhsa_float_denorm_mode_16_64 3
.end_amdhsa_kernel
"""
out = [a for a in sys.argv[1:] if not a.startswith("--")]
open(out[0] if out else "cdna_kernels/" + NAME + ".s", "w").write(txt)
print("instrs:", len(body), file=sys.stderr)
```

```python
import sys
from collections import defaultdict
from asmlib import *

NAME = "parallel_sum__ssm_conv_h3__glu_gated_reglu__prompt"
PROF = "--prof" in sys.argv
def opt(name, dflt):
    for a in sys.argv:
        if a.startswith(f"--{name}="): return type(dflt)(a.split("=")[1])
    return dflt
CODEPF = opt("codepf", 1)
WARM = opt("warm", 1)
ROT2 = opt("rot2", 0)
HPF = opt("hpf", 0)
DPF = opt("dpf", 0)
ROTW = opt("rotw", 0)
KVPOS = opt("kvpos", 0)
WARMW = opt("warmw", 1)
WARMD = opt("warmd", 1)
SLEEP = opt("sleep", 3)
NTX = " nt" if opt("ntx", 0) else ""
NTK = " nt" if opt("ntk", 1) else ""
NTW = " nt" if opt("ntw", 0) else ""
NTD = " nt" if opt("ntd", 0) else ""

WS_H  = 0x000000
WS_KV = 0x800000
WS_Y  = 0xA00000
WS_ST = 0xC00000
WS_CS = 0xC10000
WS_SF = 0xC20000
WS_EP = 0xC43000
WS_PR = 0xC50000
WS_KF = 0xC60000
WS_HF = 0xC80000
WS_YF = 0xCA0000
WS_SIZE = 0xD00000
RP = 24704
HT = 4 * RP
HP = 4512
UA = HT + 8 * HP
UP = 4224
KS_K = UA
YS = UA + 17408
XS = HT
XCH = HT
DS = UA
DSP = 7168
LDS_SIZE = 163840
sB, sW = 2, 3
sRB, sFS, sTT, sDT, sROT = 4, 5, 6, 7, 8
sT0, sT1, sT2 = 9, 10, 11
sTAG, sD, sR, sHI, sCNT = 12, 13, 14, 15, 16
sXB, sXS = 17, 18
sK0, sK1, sK2, sK3, sK4, sH3 = 19, 20, 21, 22, 23, 28
sWG, sWU = 24, 26
sEX = 30
sWS = [32, 33, 34, 35, 36, 37, 38, 39]
sWDO, sWDE, sWDS = 40, 41, 42
sHB = 43
sKVS, sKVF, sDS, sWM1, sWM2 = 80, 81, 82, 83, 84
sPK, sPH, sPY = 85, 86, 87
sHF, sHO, sHE, sHS = 24, 25, 26, 27
sYB, sYF, sO0, sSTR, sYT = 0, 1, 29, 30, 31
def srd(n): return f"s[{n}:{n+3}]"
X_, K_, V_, SH_, SSM_, W_, WD_, OUT_, WS_ = 44, 48, 52, 56, 60, 64, 68, 72, 76
sRT = 88
STP = [90, 92, 94, 96, 98, 100] + [48, 50, 52, 54, 56, 58, 20]

S = []
SLOW = []
def L(t, tag=None):
    return [Ins(line.strip(), tag) for line in t.split('\n') if line.strip()]
def A(t, tag=None): S.extend(L(t, tag))
def vr(a, n=4): return f"v[{a}:{a+n-1}]"
def ar(a, n=4): return f"a[{a}:{a+n-1}]"
def pr(a): return f"v[{a}:{a+1}]"
nstamp = 0
SEL = opt("stamps", "main").split(",")
def stampI(n): return L(f"{'s_memrealtime' if opt('rt', 1) else 's_memtime'} s[{STP[n]}:{STP[n]+1}]")
def stampL(name="main"):
    global nstamp
    if PROF and (name in ("start", "end") or name in SEL):
        nstamp += 1
        return stampI(nstamp - 1)
    return []
def stamp(name="main"): S.extend(stampL(name))

def groups(items):
    gs = []; cur = []
    for it in items:
        cur.append(it)
        if isinstance(it, Ins) and it.kind == 'vmem': gs.append(cur); cur = []
    if cur:
        if gs: gs[-1].extend(cur)
        else: gs.append(cur)
    return gs

npoll = 0
def poll_issue(vF, vAddr, soff):
    return L(f"buffer_load_dword v{vF}, v{vAddr}, {srd(WS_)}, {soff} offen sc1")
def poll_check(vF, vAddr, soff):
    global npoll
    n = npoll; npoll += 1
    o = L(f"v_cmp_ne_u32 vcc, s{sTAG}, v{vF}\ns_cbranch_vccnz L_slow{n}\nL_back{n}:")
    SLOW.extend(L(f"""L_slow{n}:
s_mov_b32 s{sCNT}, 0x40000
L_spin{n}:
buffer_load_dword v{vF}, v{vAddr}, {srd(WS_)}, {soff} offen sc1
s_waitcnt vmcnt(0)
v_cmp_ne_u32 vcc, s{sTAG}, v{vF}
s_sub_u32 s{sCNT}, s{sCNT}, 1
s_cbranch_scc1 L_back{n}
s_nop 1
s_cbranch_vccz L_back{n}
s_sleep {SLEEP}
s_branch L_spin{n}"""))
    return o
def flag_store(soff): return L(f"buffer_store_dword v{vTg}, v{vZ}, {srd(WS_)}, s{soff} offen sc1")

vL = 0
vXr = [1, 2, 3, 4]
vWo = list(range(5, 13))
vT = list(range(13, 21))
t0, t1, t2 = 21, 22, 23
vKm, vKv, vKhh, vHa = 24, 25, 26, 27
vUz, vUw, vKs, vTg, vZ, vL16, vFl, vFa = 28, 29, 30, 31, 32, 33, 34, 35
vWd = 36
vKo = 40
vKa, vKb, vKh, vSh = 40, 41, 42, 43
vSK = 44
vXg = [48, 49, 50, 51]
vDr = [52, 53]
vA8, vC8, t3 = 54, 55, 56
vF2, vFa2 = 126, 127
ACC = 128
XA = 96
def acc(ti): return vr(ACC + 16*ti, 16)
PARK = {}
def park(name, v):
    PARK[name] = 224 + len(PARK)
    assert PARK[name] < 256
    return L(f"v_accvgpr_write_b32 a{PARK[name]}, v{v}")
def unpark(name, v): return L(f"v_accvgpr_read_b32 v{v}, a{PARK[name]}")
def wda(ks): return 96 + 8*ks if ks < 16 else 8*(ks - 16)

A(f"s_cmp_ge_u32 s{sB}, 256\ns_cbranch_scc1 L_end")
stamp("start")
if PROF: A(f"s_memrealtime s[{sRT}:{sRT+1}]")
A(f"s_load_dwordx2 s[{X_}:{X_+1}], s[0:1], 0\ns_load_dwordx4 s[{sWG}:{sWG+3}], s[0:1], 56")
for sr, off in [(WS_, 96), (K_, 8), (V_, 16), (SH_, 24), (SSM_, 32), (sEX, 40), (WD_, 72), (OUT_, 80)]:
    A(f"s_load_dwordx2 s[{sr}:{sr+1}], s[0:1], {off}")
if CODEPF:
    A(f"""s_getpc_b64 s[4:5]
s_lshr_b32 s6, s{sB}, 3
s_lshl_b32 s6, s6, 10
v_lshrrev_b32 v2, 5, v0
v_lshl_add_u32 v2, v2, 7, s6
v_min_u32 v2, CODE_LAST, v2
global_load_dword v63, v2, s[4:5]""")
A(f"v_lshrrev_b32 v1, 6, v0\nv_and_b32 v{vL}, 63, v0\nv_readfirstlane_b32 s{sW}, v1")
def srd_consts(lst):
    return sum([L(f"s_mov_b32 s{sr+2}, {size}\ns_mov_b32 s{sr+3}, 0x20000") for sr, size in lst], [])
S.extend(srd_consts([(X_, 2097152), (W_, 1835008)]))
A(f"""s_bfe_u32 s{sDT}, s{sB}, 0x30003
s_and_b32 s{sT1}, s{sB}, 3
s_lshl_b32 s{sRB}, s{sT1}, 2
s_bfe_u32 s{sT0}, s{sB}, 0x20003
s_add_u32 s{sRB}, s{sRB}, s{sT0}
s_lshr_b32 s{sROT}, s{sB}, 5
s_bfe_u32 s{sT2}, s{sB}, 0x10002
s_mul_i32 s{sFS}, s{sT2}, 7
s_add_u32 s{sFS}, s{sFS}, s{sROT}
s_mul_i32 s{sT0}, s{sT0}, {ROTW}
s_add_u32 s{sROT}, s{sROT}, s{sT0}
s_lshl_b32 s{sTT}, s{sT1}, 1
s_add_u32 s{sTT}, s{sTT}, s{sT2}
s_lshl_b32 s{sTT}, s{sTT}, 2
s_lshr_b32 s{sT0}, s{sB}, 6
s_add_u32 s{sTT}, s{sTT}, s{sT0}
s_mul_i32 s{sR}, s{sW}, {RP}
s_lshl_b32 s{sXB}, s{sRB}, 17
s_lshl_b32 s{sT1}, s{sW}, 15
s_add_u32 s{sXB}, s{sXB}, s{sT1}
s_lshl_b32 s{sXS}, s{sW}, 13
s_add_u32 s{sXS}, s{sXS}, {XS}""")
A(f"""v_lshrrev_b32 v{vA8}, 3, v{vL}
v_and_b32 v{vC8}, 7, v{vL}
v_lshlrev_b32 v{vL16}, 4, v{vL}
v_lshrrev_b32 v{t0}, 4, v{vL}
v_xor_b32 v{t1}, v{t0}, v{vC8}
v_lshlrev_b32 v{t1}, 4, v{t1}
v_lshl_add_u32 v{vXg[0]}, v{vA8}, 10, v{t1}
v_xor_b32 v{vXg[1]}, 64, v{vXg[0]}
v_add_u32 v{vXg[2]}, {7168*2}, v{vXg[0]}
v_add_u32 v{vXg[3]}, {7168*3}, v{vXg[1]}
v_add_u32 v{vXg[1]}, 7168, v{vXg[1]}
v_and_b32 v{t1}, 15, v{vL}
v_lshlrev_b32 v{t2}, 1, v{t0}
v_xor_b32 v{t1}, v{t1}, v{t2}
v_lshlrev_b32 v{t1}, 4, v{t1}
v_mul_u32_u24 v{t0}, 3584, v{t0}
v_add_u32 v{vWo[0]}, v{t0}, v{t1}""")
for n in range(1, 8): A(f"v_add_u32 v{vWo[n]}, {4*n*3584 - 1024*(n & 3)}, v{vWo[0]}")
A(f"""s_lshr_b32 s{sT1}, s{sW}, 1
s_mul_i32 s{sT2}, s{sT1}, {32*3584}
s_lshl_b32 s{sT1}, s{sFS}, 8
s_add_u32 s{sT2}, s{sT2}, s{sT1}""")
def ws_calc(s): return L(f"""s_add_u32 s{sWS[s]}, s{sROT}, {s}
s_and_b32 s{sWS[s]}, s{sWS[s]}, 7
s_mul_i32 s{sWS[s]}, s{sWS[s]}, {64*3584}
s_add_u32 s{sWS[s]}, s{sWS[s]}, s{sT2}""")
S.extend(ws_calc(0))
def x_dma(bt):
    o = L(f"""s_add_u32 s{sT0}, s{sROT}, {bt}
s_and_b32 s{sT0}, s{sT0}, 7
s_lshl_b32 s{sT0}, s{sT0}, 7
s_add_u32 m0, s{sXS}, {(bt & 1) * 4096}
s_add_u32 s{sT0}, s{sT0}, s{sXB}""")
    for rg in range(4):
        o += L(f"buffer_load_dwordx4 v{vXg[rg]}, {srd(X_)}, s{sT0} offen offset:{1024*rg}{NTX} lds", tag=f"x{bt}")
    return o
def sig(s): return (s + 1) % 3
def w_dma(s):
    o = []
    for n in range(8):
        if n % 4 == 0: o += L(f"s_add_u32 m0, s{sR}, {sig(s)*8192 + 1024*n}")
        o += L(f"buffer_load_dwordx4 v{vWo[n]}, {srd(W_)}, s{sWS[s]} offen offset:{1024*(n&3)}{NTW} lds", tag=f"w{s}")
    return o
S.append(WaitTag(lgkm0=True))
stamp("p")
A(f"s_cmp_ge_u32 s{sB}, 224\ns_cbranch_scc1 L_skip0")
S.extend(x_dma(0))
A(f"""s_bitcmp1_b32 s{sW}, 0
s_cselect_b32 s{W_}, s{sWU}, s{sWG}
s_cselect_b32 s{W_+1}, s{sWU+1}, s{sWG+1}""")
S.extend(w_dma(0))
A(f"""s_branch L_skip1
L_skip0:
s_bitcmp1_b32 s{sB}, 3
s_cselect_b32 s{W_}, s{sWU}, s{sWG}
s_cselect_b32 s{W_+1}, s{sWU+1}, s{sWG+1}
s_and_b32 s{sT1}, s{sRB}, 3
s_add_u32 s{sXB}, s{sTT}, s{sT1}
s_sub_u32 s{sXB}, s{sXB}, 3
s_lshl_b32 s{sXB}, s{sXB}, 2
s_add_u32 s{sXB}, s{sXB}, s{sW}
s_lshl_b32 s{sT0}, s{sXB}, 14
s_add_u32 s{sT1}, s{sT0}, 8192
v_lshlrev_b32 v{t1}, 4, v{vC8}
v_lshl_add_u32 v{t1}, v{vA8}, 10, v{t1}""")
S.append(State('save', 'sk'))
AEARLY = []
for rg in range(2):
    for cc in range(8):
        AEARLY += L(f"buffer_load_dwordx4 {vr(64 + 32*rg + 4*cc)}, v{t1}, {srd(X_)}, s{sT0 if rg == 0 else sT1} offen offset:{128*cc}")
S.extend(AEARLY)
S.append(State('restore', 'sk'))
A("L_skip1:")
for s in range(1, 8): S.extend(ws_calc(s))
A(f"""s_add_u32 s0, s{WS_}, {WS_EP}
s_addc_u32 s1, s{WS_+1}, 0
s_load_dword s{sTAG}, s[0:1], 0
s_lshl_b32 s{sT1}, s{sB}, 2
s_add_u32 s{sEX}, s{sEX}, s{sT1}
s_addc_u32 s{sEX+1}, s{sEX+1}, 0
s_load_dword s{sD}, s[{sEX}:{sEX+1}], 0""")
stamp("p")
S.extend(srd_consts([(K_, 2097152), (V_, 2097152), (SH_, 4096), (SSM_, 2097152), (WD_, 1835008), (OUT_, 2097152), (WS_, WS_SIZE)]))
A(f"s_mov_b32 s{sHI}, 0xffff0000\nv_lshlrev_b32 v{vZ}, 24, v{vL}")
A(f"""v_and_b32 v{t0}, 31, v{vL}
v_lshrrev_b32 v{t1}, 5, v{vL}
v_bfe_u32 v{t2}, v{vL}, 1, 3
v_xor_b32 v{t1}, v{t1}, v{t2}
v_lshlrev_b32 v{t1}, 4, v{t1}
v_lshlrev_b32 v{vFa}, 7, v{t0}
v_add_u32 v{t0}, s{sXS}, v{vFa}""")
for ks in range(4):
    A(f"v_xor_b32 v{t2}, {32*ks}, v{t1}\nv_add_u32 v{vXr[ks]}, v{t0}, v{t2}")
A(f"""v_bfe_u32 v{t0}, v{vL}, 4, 1
v_mul_u32_u24 v{t0}, {RP}, v{t0}
v_lshrrev_b32 v{t1}, 5, v{vL}
v_bfe_u32 v{t2}, v{vL}, 2, 2
v_lshl_add_u32 v{t1}, v{t1}, 3, v{t2}
v_lshl_add_u32 v{t0}, v{t1}, 8, v{t0}
v_and_b32 v{t1}, 3, v{vL}
v_lshl_add_u32 v{t0}, v{t1}, 3, v{t0}
v_lshlrev_b32 v{t2}, 5, v{t2}""")
for tl in range(4):
    A(f"v_xor_b32 v{t1}, {32*tl}, v{t2}\nv_add_u32 v{vT[tl]}, v{t0}, v{t1}\nv_add_u32 v{vT[4+tl]}, {2*RP}, v{vT[tl]}")
A(f"""s_add_u32 s{sT2}, s{sW}, 1
v_xor_b32 v{vKa}, s{sT2}, v{vC8}
v_lshlrev_b32 v{vKa}, 4, v{vKa}
v_lshl_add_u32 v{vKa}, v{vA8}, 10, v{vKa}
v_xor_b32 v{vKb}, 64, v{vKa}
s_lshl_b32 s{sK0}, s{sTT}, 16
s_lshl_b32 s{sK1}, s{sDT}, 7
s_add_u32 s{sK0}, s{sK0}, s{sK1}
s_sub_u32 s{sK1}, s{sK0}, 8192
v_lshlrev_b32 v{t3}, 4, v{vC8}
v_lshl_add_u32 v{t3}, v{vA8}, 10, v{t3}""")
S.extend(park("xo", t3))
A(f"""v_add_u32 v{vKh}, s{sK1}, v{t3}
s_lshl_b32 s{sK1}, s{sW}, 13
s_add_u32 s{sK0}, s{sK0}, s{sK1}
s_mov_b32 s{sO0}, s{sK0}
s_add_u32 s{sK1}, s{sK0}, 32768
v_lshlrev_b32 v{vSh}, 4, v{vA8}
s_lshl_b32 s{sK2}, s{sDT}, 9
s_lshl_b32 s{sT1}, s{sW}, 7
s_add_u32 s{sK2}, s{sK2}, s{sT1}
s_lshl_b32 s{sK3}, s{sT2}, 10
s_add_u32 s{sK3}, s{sK3}, {KS_K}
s_lshr_b32 s{sT2}, s{sW}, 1
s_mul_i32 s{sT2}, s{sT2}, {4*HP - 4096}
s_lshl_b32 s{sT1}, s{sW}, 11
s_add_u32 s{sT2}, s{sT2}, s{sT1}
s_add_u32 s{sH3}, s{sT2}, {HT + 3*HP + 384}
s_lshl_b32 s{sK4}, s{sB}, 13
s_add_u32 s{sK4}, s{sK4}, s{sT1}""")
def kv_loads():
    o = [L(f"""s_lshl_b32 s{sT1}, s{sW}, 4
s_mov_b64 vcc, 0xffff
s_lshl_b64 vcc, vcc, s{sT1}
s_mov_b32 m0, {KS_K}
s_mov_b64 exec, vcc
buffer_load_dwordx4 v{vKh}, {srd(K_)}, 0 offen{NTK} lds
s_mov_b64 exec, -1""", tag="kv")]
    o += groups(L(f"""s_mov_b32 m0, s{sK3}
buffer_load_dwordx4 v{vKa}, {srd(K_)}, s{sK0} offen{NTK} lds
s_add_u32 m0, s{sK3}, 4096
buffer_load_dwordx4 v{vKb}, {srd(K_)}, s{sK1} offen{NTK} lds
s_add_u32 m0, s{sK3}, 8192
buffer_load_dwordx4 v{vKa}, {srd(V_)}, s{sK0} offen{NTK} lds
s_add_u32 m0, s{sK3}, 12288
buffer_load_dwordx4 v{vKb}, {srd(V_)}, s{sK1} offen{NTK} lds
buffer_load_dwordx4 {vr(vSK)}, v{vSh}, {srd(SH_)}, s{sK2} offen""", tag="kv"))
    return o
def flat(gs): return sum(gs, [])
if KVPOS == 0: S.extend(flat(kv_loads()))
A(f"""v_sub_u32 v{t0}, 7, v{vC8}
v_lshrrev_b32 v{t1}, 5, v{vL}
s_lshl_b32 s{sT1}, s{sW}, 1
v_add_u32 v{t1}, s{sT1}, v{t1}
v_and_b32 v{t2}, 3, v{vA8}
v_lshlrev_b32 v{t2}, 2, v{t2}
v_lshl_add_u32 v{t2}, v{t0}, 10, v{t2}
v_xor_b32 v{t3}, v{t1}, v{t0}
v_lshl_add_u32 v{vKhh}, v{t3}, 4, v{t2}
v_add_u32 v{vKhh}, {KS_K + 640}, v{vKhh}
v_add_u32 v{t3}, 1, v{t0}
v_and_b32 v{t3}, 7, v{t3}
v_xor_b32 v{t3}, v{t1}, v{t3}
v_lshl_add_u32 v{vKm}, v{t3}, 4, v{t2}
v_add_u32 v{vKm}, {KS_K + 1024}, v{vKm}
v_add_u32 v{vKv}, 8192, v{vKm}
v_add_u32 v{vHa}, s{sH3}, v{vL16}
v_subrev_u32 v{vHa}, {3*HP}, v{vHa}
v_lshlrev_b32 v{vKs}, 4, v{vC8}
v_lshl_add_u32 v{t0}, v{vA8}, 12, v{vKs}""")
S.extend(park("yo", t0))
A(f"v_lshl_add_u32 v{vKs}, v{vA8}, 13, v{vKs}")
A(f"""v_bfe_u32 v{t0}, v{vL}, 4, 1
v_lshlrev_b32 v{t0}, 2, v{t0}
v_xor_b32 v{t0}, v{vC8}, v{t0}
v_lshlrev_b32 v{t0}, 4, v{t0}
v_lshl_add_u32 v{vWd}, v{vA8}, 10, v{t0}
v_add_u32 v{vWd+1}, 7168, v{vWd}""")
A(f"""v_and_b32 v{t0}, 31, v{vL}
v_min_u32 v{t0}, 23, v{t0}
v_lshrrev_b32 v{t1}, 5, v{vL}
v_mul_u32_u24 v{t1}, {HP}, v{t1}
v_lshl_add_u32 v{t0}, v{t0}, 4, v{t1}
s_mul_i32 s{sT1}, s{sW}, {2*HP}
s_add_u32 s{sT1}, s{sT1}, {HT}
v_add_u32 v{t0}, s{sT1}, v{t0}""")
S.extend(park("tz", t0))
A(f"""s_sub_u32 s{sT1}, s{sK4}, 8
v_add_u32 v{t0}, s{sT1}, v{vL16}
s_and_b32 s{sT1}, s{sW}, 1
v_or_b32 v{t1}, s{sT1}, v{vL}
v_cmp_eq_u32 vcc, 0, v{t1}
v_cndmask_b32 v{t0}, v{t0}, -1, vcc""")
S.extend(park("sh", t0))
A(f"""s_lshr_b32 s{sT0}, s{sW}, 1
s_mul_i32 s{sT0}, s{sT0}, {2*UP}
s_add_u32 s{sT0}, s{sT0}, {UA}
s_and_b32 s{sT1}, s{sW}, 1
s_lshl_b32 s{sT2}, s{sT1}, 11
s_add_u32 s{sT2}, s{sT2}, s{sT0}
v_add_u32 v{vUw}, s{sT2}, v{vL16}
s_mul_i32 s{sT2}, s{sT1}, {UP - 8}
s_add_u32 s{sT2}, s{sT2}, s{sT0}
s_add_u32 s{sT2}, s{sT2}, 4096
v_min_u32 v{vUz}, 14, v{vL}
v_lshlrev_b32 v{vUz}, 3, v{vUz}
v_add_u32 v{vUz}, s{sT2}, v{vUz}""")
A(f"""v_and_b32 v{t0}, 1, v{vL}
v_xor_b32 v{t0}, 1, v{t0}
v_mul_u32_u24 v{t0}, {UP}, v{t0}
v_bfe_u32 v{t1}, v{vL}, 1, 3
v_sub_u32 v{t1}, 7, v{t1}
v_lshrrev_b32 v{t2}, 4, v{vL}
v_add_u32 v{t1}, v{t1}, v{t2}
v_lshl_add_u32 v{t0}, v{t1}, 4, v{t0}
s_xor_b32 s{sT2}, s{sT1}, 1
s_lshl_b32 s{sT2}, s{sT2}, 8
s_add_u32 s{sT2}, s{sT2}, s{sT0}
v_add_u32 v{t0}, s{sT2}, v{t0}""")
S.extend(park("cb", t0))
A(f"""v_sub_u32 v{t0}, 63, v{vL}
v_lshlrev_b32 v{t0}, 3, v{t0}
s_xor_b32 s{sT2}, s{sT1}, 1
s_lshl_b32 s{sT2}, s{sT2}, 11
s_add_u32 s{sT2}, s{sT2}, s{sT0}
v_add_u32 v{t0}, s{sT2}, v{t0}""")
S.extend(park("cu", t0))
A(f"""v_and_b32 v{t0}, 3, v{vL}
v_mul_u32_u24 v{t0}, {HP}, v{t0}
v_bfe_u32 v{t1}, v{vL}, 2, 2
v_lshl_add_u32 v{t0}, v{t1}, 7, v{t0}
v_lshl_add_u32 v{t0}, v{t2}, 4, v{t0}
s_lshr_b32 s{sT0}, s{sW}, 1
s_mul_i32 s{sT0}, s{sT0}, {4*HP}
s_xor_b32 s{sT2}, s{sT1}, 1
s_lshl_b32 s{sT2}, s{sT2}, 8
s_add_u32 s{sT0}, s{sT0}, s{sT2}
s_add_u32 s{sT0}, s{sT0}, {HT}
v_add_u32 v{t0}, s{sT0}, v{t0}""")
S.extend(park("ca", t0))
A(f"""v_lshrrev_b32 v{t0}, 5, v{vL}
v_bfe_u32 v{t1}, v{vL}, 2, 2
v_lshl_add_u32 v{t0}, v{t0}, 2, v{t1}
v_lshlrev_b32 v{t0}, 7, v{t0}
v_bfe_u32 v{t1}, v{vL}, 3, 1
v_lshl_add_u32 v{t0}, v{t1}, 6, v{t0}
v_bfe_u32 v{t1}, v{vL}, 4, 1
v_lshl_add_u32 v{t0}, v{t1}, 5, v{t0}
v_and_b32 v{t1}, 3, v{vL}
v_lshl_add_u32 v{t0}, v{t1}, 3, v{t0}
s_mul_i32 s{sDS}, s{sW}, {DSP}
s_add_u32 s{sDS}, s{sDS}, {DS}
v_add_u32 v{vDr[0]}, s{sDS}, v{t0}
v_add_u32 v{t1}, s{sR}, v{t0}""")
S.extend(park("td0", t1))
A(f"v_xor_b32 v{t0}, 64, v{t0}\nv_add_u32 v{vDr[1]}, s{sDS}, v{t0}\nv_add_u32 v{t1}, s{sR}, v{t0}")
S.extend(park("td1", t1))
A(f"""v_bfe_u32 v{t0}, v{vL}, 2, 1
v_and_b32 v{t1}, 3, v{vL}
v_lshl_add_u32 v{t0}, v{t0}, 4, v{t1}
v_lshlrev_b32 v{t0}, 7, v{t0}""")
S.extend(park("fh", t0))
A(f"""s_lshl_b32 s{sT1}, s{sDT}, 7
v_lshl_add_u32 v{t0}, v{vL}, 10, s{sT1}
v_cmp_gt_u32 vcc, 7, v{vL}
v_cndmask_b32 v{t0}, -1, v{t0}, vcc""")
S.extend(park("ht", t0))
A(f"""s_and_b32 s{sT1}, s{sTT}, 3
s_lshl_b32 s{sT1}, s{sT1}, 10
v_lshl_add_u32 v{t0}, v{vL}, 12, s{sT1}
v_cmp_gt_u32 vcc, 28, v{vL}
v_cndmask_b32 v{vWd+2}, -1, v{t0}, vcc""")
PP = 272; YP = 144; Y2P = 144
A(f"""v_and_b32 v{t0}, 31, v{vL}
v_mul_u32_u24 v{t0}, {PP}, v{t0}
v_lshrrev_b32 v{t1}, 5, v{vL}
v_lshl_add_u32 v{t0}, v{t1}, 4, v{t0}
v_add_u32 v{t0}, s{sR}, v{t0}""")
S.extend(park("pw", t0))
A(f"""s_lshl_b32 s{sT1}, s{sW}, 3
v_add_u32 v{t2}, s{sT1}, v{vA8}
v_mul_u32_u24 v{t0}, {PP}, v{t2}
v_lshl_add_u32 v{t0}, v{vC8}, 5, v{t0}""")
S.extend(park("pr", t0))
A(f"""v_mul_u32_u24 v{t0}, {Y2P}, v{t2}
v_lshl_add_u32 v{t0}, v{vC8}, 4, v{t0}
v_add_u32 v{t0}, {YS}, v{t0}""")
S.extend(park("y2r", t0))
A(f"""v_mul_u32_u24 v{t0}, {YP}, v{vA8}
v_lshl_add_u32 v{t0}, v{vC8}, 4, v{t0}
s_add_u32 s{sT1}, s{sR}, 17408
v_add_u32 v{t0}, s{sT1}, v{t0}""")
S.extend(park("y1w", t0))
A(f"""v_bfe_u32 v{t0}, v{vL}, 2, 2
v_mul_u32_u24 v{t0}, {YP}, v{t0}
v_and_b32 v{t1}, 3, v{vL}
v_lshl_add_u32 v{t0}, v{t1}, 3, v{t0}
v_lshrrev_b32 v{t1}, 4, v{vL}
v_lshl_add_u32 v{t0}, v{t1}, 5, v{t0}
v_add_u32 v{t0}, s{sT1}, v{t0}""")
S.extend(park("y1r", t0))
A(f"""v_mul_u32_u24 v{t0}, {Y2P}, v{vL}
s_lshl_b32 s{sT1}, s{sW}, 5
s_add_u32 s{sT1}, s{sT1}, {YS}
v_add_u32 v{t0}, s{sT1}, v{t0}""")
S.extend(park("y2w", t0))
A(f"""s_lshr_b32 s{sPY}, s{sTT}, 4
s_lshl_b32 s{sPY}, s{sPY}, 16
s_lshl_b32 s{sT0}, s{sDT}, 13
s_add_u32 s{sPY}, s{sPY}, s{sT0}
s_lshl_b32 s{sT0}, s{sW}, 11
s_add_u32 s{sPY}, s{sPY}, s{sT0}
s_add_u32 s{sPY}, s{sPY}, {WS_YF}""")
A(f"""s_lshl_b32 s{sT0}, s{sRB}, 3
s_lshl_b32 s{sT1}, s{sW}, 1
s_add_u32 s{sT0}, s{sT0}, s{sT1}
s_lshl_b32 s{sT0}, s{sT0}, 7
s_lshl_b32 s{sT1}, s{sFS}, 8
s_add_u32 s{sT1}, s{sT1}, 0x4000
v_mov_b32 v{t0}, s{sT0}
v_mov_b32 v{t1}, s{sT1}
v_and_b32 v{t2}, 2, v{vL}
v_cmp_eq_u32 vcc, 0, v{t2}
v_cndmask_b32 v{t0}, v{t1}, v{t0}, vcc
v_and_b32 v{t2}, 1, v{vL}
v_lshl_add_u32 v{t0}, v{t2}, 7, v{t0}
v_add_u32 v{t0}, {WS_SF}, v{t0}""")
S.extend(park("f2", t0))
A(f"""s_lshl_b32 s{sT0}, s{sTT}, 9
s_add_u32 s{sT0}, s{sT0}, {WS_SF}
v_and_b32 v{t2}, 3, v{vL}
v_lshlrev_b32 v{t2}, 7, v{t2}
v_add_u32 v{t2}, s{sT0}, v{t2}""")
S.extend(park("fs", t2))
A(f"""s_lshl_b32 s{sT1}, s{sDT}, 18
s_lshl_b32 s{sT2}, s{sW}, 16
s_add_u32 s{sT1}, s{sT1}, s{sT2}
s_lshl_b32 s{sT2}, s{sTT}, 7
s_sub_u32 s{sKVS}, s{sT1}, s{sT2}
s_add_u32 s{sKVS}, s{sKVS}, {WS_KV + 2*1984}
s_lshr_b32 s{sKVF}, s{sT1}, 4
s_add_u32 s{sKVF}, s{sKVF}, s{sT2}
s_add_u32 s{sKVF}, s{sKVF}, {WS_KF}
s_lshl_b32 s{sWM1}, s{sB}, 1
s_lshr_b32 s{sT0}, s{sW}, 1
s_add_u32 s{sWM1}, s{sWM1}, s{sT0}
s_lshl_b32 s{sWM1}, s{sWM1}, 12
s_lshl_b32 s{sWM2}, s{sB}, 2
s_add_u32 s{sWM2}, s{sWM2}, s{sW}
s_lshl_b32 s{sWM2}, s{sWM2}, 11
s_lshr_b32 s{sPK}, s{sB}, 3
s_lshl_b32 s{sPK}, s{sPK}, 12
s_add_u32 s{sPK}, s{sPK}, {WS_KF}
s_lshl_b32 s{sPH}, s{sTT}, 12
s_mul_i32 s{sT0}, s{sW}, 7
s_lshr_b32 s{sT0}, s{sT0}, 1
s_lshl_b32 s{sT0}, s{sT0}, 7
s_add_u32 s{sPH}, s{sPH}, s{sT0}
s_add_u32 s{sPH}, s{sPH}, {WS_HF}
s_mul_i32 s{sWDS}, s{sW}, {448*1024}
s_lshl_b32 s{sT0}, s{sDT}, 7
s_add_u32 s{sWDS}, s{sWDS}, s{sT0}
s_add_u32 s{sWDE}, s{sWDS}, {448*1024}
s_lshl_b32 s{sT0}, s{sRB}, 2
s_add_u32 s{sT0}, s{sT0}, s{sW}
s_mul_i32 s{sHB}, s{sT0}, {112*1024}
s_lshl_b32 s{sT2}, s{sFS}, 13
s_add_u32 s{sHB}, s{sHB}, s{sT2}
s_lshl_b32 s{sHF}, s{sT0}, 4
s_add_u32 s{sHF}, s{sHF}, s{sFS}
s_lshl_b32 s{sHF}, s{sHF}, 7
s_add_u32 s{sHF}, s{sHF}, {WS_HF}
s_mul_i32 s{sHS}, s{sTT}, {224*1024}
s_mul_i32 s{sT1}, s{sW}, {28*1024}
s_add_u32 s{sHS}, s{sHS}, s{sT1}
s_add_u32 s{sHE}, s{sHS}, {28*1024}""")
if ROT2:
    A(f"""s_mul_i32 s{sT1}, s{sDT}, 7
s_lshr_b32 s{sT1}, s{sT1}, 2
s_and_b32 s{sT2}, s{sTT}, 3
s_mul_i32 s{sT2}, s{sT2}, 7
s_lshr_b32 s{sT2}, s{sT2}, 1
s_add_u32 s{sT2}, s{sT1}, s{sT2}
s_sub_u32 s{sT1}, s{sT2}, 14
s_cmp_ge_u32 s{sT2}, 14
s_cselect_b32 s{sT2}, s{sT1}, s{sT2}
s_lshl_b32 s{sWDO}, s{sT2}, 15
s_add_u32 s{sWDO}, s{sWDO}, s{sWDS}
s_lshl_b32 s{sHO}, s{sT2}, 11
s_add_u32 s{sHO}, s{sHO}, s{sHS}""")
else:
    A(f"s_mov_b32 s{sWDO}, s{sWDS}\ns_mov_b32 s{sHO}, s{sHS}")
S.append(WaitTag(lgkm0=True))
A(f"""s_add_u32 s{sTAG}, s{sTAG}, 1
s_add_u32 s{sYB}, s{sK4}, {WS_Y}
s_and_b32 s{sYF}, s{sW}, 1
s_lshl_b32 s{sYF}, s{sYF}, 9
s_lshl_b32 s{sT1}, s{sB}, 1
s_add_u32 s{sYF}, s{sYF}, s{sT1}
s_lshr_b32 s{sT1}, s{sW}, 1
s_add_u32 s{sYF}, s{sYF}, s{sT1}
s_lshl_b32 s{sYF}, s{sYF}, 7
s_add_u32 s{sYF}, s{sYF}, {WS_YF}
v_mov_b32 v{vTg}, s{sTAG}
s_lshl_b32 s{sT1}, s{sD}, 16
s_and_b32 s{sT2}, s{sD}, s{sHI}
s_bitcmp1_b32 s{sW}, 1
s_cselect_b32 s{sD}, s{sT2}, s{sT1}
s_lshr_b32 s{sSTR}, s{sO0}, 10
s_lshl_b32 s{sSTR}, s{sSTR}, 4
s_add_u32 s{sSTR}, s{sSTR}, {WS_ST}
s_lshl_b32 s{sT1}, s{sW}, 16
s_lshl_b32 s{sYT}, s{sDT}, 18
s_add_u32 s{sYT}, s{sYT}, s{sT1}
s_lshl_b32 s{sT1}, s{sTT}, 7
s_add_u32 s{sYT}, s{sYT}, s{sT1}
s_add_u32 s{sYT}, s{sYT}, {WS_Y}""")
stamp("p")

KR = 64; VRW = 80; kf = 88; wf = 110
OP = [KR + 2*i for i in range(8)]
def kv_reads():
    o = L(f"ds_read2_b32 {pr(KR)}, v{vKhh} offset0:0 offset1:32\nds_read_b32 v{KR+2}, v{vKhh} offset:256")
    o += sum([L(f"ds_read2_b32 {pr(KR+4+2*i)}, v{vKm} offset0:{64*i} offset1:{64*i+32}") for i in range(4)], [])
    o += sum([L(f"ds_read2_b32 {pr(VRW+2*i)}, v{vKv} offset0:{64*i} offset1:{64*i+32}") for i in range(4)], [])
    return o
def kv_compute():
    wk = []
    for c in range(2):
        for h in range(2):
            wk += L(f"v_lshlrev_b32 v{wf+4*h+c}, 16, v{vSK+2*c+h}\nv_and_b32 v{wf+4*h+2+c}, s{sHI}, v{vSK+2*c+h}")
    ksrc = [KR, KR+1, KR+2] + list(range(KR+4, KR+12))
    for i in range(11):
        wk += L(f"v_lshlrev_b32 v{kf+2*i}, 16, v{ksrc[i]}\nv_and_b32 v{kf+2*i+1}, s{sHI}, v{ksrc[i]}")
    for i in range(8):
        for c in range(2): wk += L(f"v_mul_f32 v{OP[i]+c}, v{kf+2*(i+3)+c}, v{wf+c}")
    for tap in range(1, 4):
        for i in range(8):
            for c in range(2): wk += L(f"v_fmac_f32 v{OP[i]+c}, v{kf+2*(i+3-tap)+c}, v{wf+2*tap+c}")
    for i in range(8):
        wk += L(f"v_lshlrev_b32 v{kf+2*i}, 16, v{VRW+i}\nv_and_b32 v{kf+2*i+1}, s{sHI}, v{VRW+i}")
    for i in range(8):
        for c in range(2): wk += L(f"v_mul_f32 v{OP[i]+c}, v{OP[i]+c}, v{kf+2*i+c}")
    for c in range(2):
        for m in range(4):
            wk += L(f"v_cvt_pk_bf16_f32 v{vKo+4*c+m}, v{OP[7-2*m]+c}, v{OP[6-2*m]+c}")
    return wk
def kv_stores():
    return [L(f"buffer_store_dwordx4 {vr(vKo)}, v{vKs}, {srd(WS_)}, s{sKVS} offen sc1", tag="kvst"),
            L(f"s_add_u32 s{sKVS}, s{sKVS}, 4096") + L(f"buffer_store_dwordx4 {vr(vKo+4)}, v{vKs}, {srd(WS_)}, s{sKVS} offen sc1", tag="kvst")]
hd = [120, 54]
def ssm_loads():
    o = [L(f"buffer_load_dwordx4 {vr(hd[n]+2)}, v{vL16}, {srd(SSM_)}, s{sK4} offen offset:{1024*n}{NTK}") for n in range(2)]
    o.append(unpark("sh", t2) + L(f"buffer_load_dwordx2 {pr(hd[0])}, v{t2}, {srd(SSM_)}, 0 offen"))
    o.append(L(f"buffer_load_dwordx2 {pr(hd[1])}, v{vL16}, {srd(SSM_)}, s{sK4} offen offset:1016"))
    return o
TZ = 60
def tab_zero():
    return unpark("tz", t0) + L("\n".join(f"v_mov_b32 v{TZ+i}, 0" for i in range(4))) + L(f"ds_write_b128 v{t0}, {vr(TZ)}")
def tab_build():
    o_ = []
    for n in range(2):
        e0, e1, d0, d1, d2, d3 = range(hd[n], hd[n] + 6)
        o = 64 + 12 * n
        blk = [L(f"""v_alignbit_b32 v{o}, v{e1}, v{e0}, 16
v_alignbit_b32 v{o+1}, v{d0}, v{e1}, 16
v_alignbit_b32 v{o+2}, v{d1}, v{d0}, 16
v_alignbit_b32 v{o+3}, v{d2}, v{d1}, 16"""), L(f"""v_mov_b32 v{o+4}, v{e1}
v_mov_b32 v{o+5}, v{d0}
v_mov_b32 v{o+6}, v{d1}
v_mov_b32 v{o+7}, v{d2}"""), L(f"""v_alignbit_b32 v{o+8}, v{d0}, v{e1}, 16
v_alignbit_b32 v{o+9}, v{d1}, v{d0}, 16
v_alignbit_b32 v{o+10}, v{d2}, v{d1}, 16
v_alignbit_b32 v{o+11}, v{d3}, v{d2}, 16""")]
        o_ += L(f"ds_write_b128 v{vHa}, {vr(d0)} offset:{3*HP + 1024*n}")
        for s in range(3):
            o_ += blk[s] + L(f"ds_write_b128 v{vHa}, {vr(o+4*s)} offset:{s*HP + 1024*n}")
    return o_
def u_loads():
    return [L(f"s_add_u32 s{sK4}, s{sK4}, {WS_KV}\nbuffer_load_dwordx4 {vr(vKo)}, v{vL16}, {srd(WS_)}, s{sK4} offen sc1"),
            L(f"buffer_load_dwordx4 {vr(vKo+4)}, v{vL16}, {srd(WS_)}, s{sK4} offen offset:1024 sc1")]
def u_writes():
    o = L(f"ds_write_b64 v{vUz}, {pr(TZ)}")
    for n in range(2):
        o += L(f"""ds_write_b128 v{vUw}, {vr(vKo+4*n)} offset:{1024*n}
ds_write_b64 v{vUw}, v[{vKo+4*n}:{vKo+1+4*n}] offset:{1024*n + UP - 8}
ds_write_b64 v{vUw}, v[{vKo+2+4*n}:{vKo+3+4*n}] offset:{1024*n + UP}""")
    return o
def wd_adv(step, wrap):
    o = L(f"s_add_u32 s{sWDO}, s{sWDO}, {step}")
    if wrap and ROT2: o += L(f"s_cmp_eq_u32 s{sWDO}, s{sWDE}\ns_cselect_b32 s{sWDO}, s{sWDS}, s{sWDO}")
    return o
def wd_dma(nks, ldsoff, tag, ks0):
    o = []
    for k in range(nks):
        o += L(f"s_add_u32 m0, s{sR}, {ldsoff + 2048*k}")
        for n in range(2):
            o += L(f"buffer_load_dwordx4 v{vWd + n}, {srd(WD_)}, s{sWDO} offen offset:{1024*n}{NTD} lds", tag=tag)
        o += wd_adv(16*1024, (ks0 + k) % 2 == 1)
    return o
def wdc_dma(c):
    o = []
    for k in range(3):
        o += L(f"s_add_u32 m0, s{sDS}, {2048*k}")
        for n in range(2):
            o += L(f"buffer_load_dwordx4 v{vWd + n}, {srd(WD_)}, s{sWDO} offen offset:{1024*n}{NTD} lds", tag=f"wdc{c}")
        o += wd_adv(16*1024, (3*c + k) % 2 == 1)
    return o
def wd_reads(ks0, nks, ldsoff, base):
    o = []
    for k in range(nks):
        for dt in range(2):
            b = wda(ks0 + k) + 4*dt
            off = ldsoff + 2048*k
            o += L(f"ds_read_b64_tr_b16 a[{b}:{b+1}], v{base[dt]} offset:{off}\nds_read_b64_tr_b16 a[{b+2}:{b+3}], v{base[dt]} offset:{off+1024}")
    return o
def rnd(r): return f"v_cvt_pk_bf16_f32 v{r}, v{r}, v{r}\nv_lshlrev_b32 v{r}, 16, v{r}"

A(f"s_cmp_ge_u32 s{sB}, 224\ns_cbranch_scc1 L_apath")
NS0 = nstamp
def x_read(bt):
    return [WaitTag(vm=f"x{bt}")] + sum([L(f"ds_read_b128 {ar(XA+16*bt+4*ks)}, v{vXr[ks]} offset:{(bt&1)*4096}") for ks in range(4)], [])
NB = opt('nb', 14)
NM = 264
order = []
for s in range(7):
    for ks in range(4):
        for ti in range(8): order.append((s, ks, ti))
for ti in range(8):
    for ks in range(4): order.append((7, ks, ti))
CSA = 100
BSEQ = {2: 108, 0: 110, 3: 114, 1: 116}
main = []; gap_of = {}
seen = set()
for i, (s, ks, ti) in enumerate(order):
    kk = 4*s + ks
    c = "0" if ti not in seen else acc(ti)
    seen.add(ti)
    gap_of[i] = len(main)
    main.append(Ins(f"v_mfma_f32_32x32x16_bf16 {acc(ti)}, {ar(4*(i % NB))}, {ar(XA+4*kk)}, {c}"))
    if s == 7 and ks == 3:
        main.append(Ins(f"v_mfma_f32_32x32x16_bf16 {acc(ti)}, {vr(CSA + 4*(ti>>2))}, {vr(BSEQ[ti & 3])}, {acc(ti)}"))
assert len(main) == NM
def frag_reads(i):
    s, ks, ti = order[i]
    b = 4 * (i % NB)
    off = sig(s)*8192 + 16*(ks & 1)*256 + 128*(ti >> 2)
    rg = vT[4*(ks >> 1) + (ti & 3)]
    return L(f"ds_read_b64_tr_b16 a[{b}:{b+1}], v{rg} offset:{off}\nds_read_b64_tr_b16 a[{b+2}:{b+3}], v{rg} offset:{off+1024}")
SC = Sched(NM)
pre = []
LA = opt('la', 7)
def put(g, items):
    if g < 0: pre.extend(items)
    else: SC.pin(g, items)
def bar(s): return 32*s - LA - 1 if s < 8 else NM - 10
KVB = opt("kvb", 2 if KVPOS else 1)
SSB = 6
for s in range(9):
    g0 = bar(s)
    tags = ([f"w{s}"] if s < 8 else []) + (["kv"] if s == KVB else [])
    if s == 0: put(-1, x_read(0))
    put(g0, [WaitTag(vm=tags, lgkm0=True)] + L("s_barrier") + stampL("g"))
    if s == 0:
        for n in range(LA + 1): put(-1, frag_reads(n))
        for n in range(LA + 1, 32): put(((n - LA - 1) * (28 - LA)) // (31 - LA), frag_reads(n))
    elif s < 7:
        for n in range(32): put(g0 + (n * 28) // 32, frag_reads(32*s + n))
    elif s == 7:
        for n in range(32): put(max(g0 + (n * 28) // 32, gap_of[224 + n - NB] + 1), frag_reads(224 + n))
WG_ = opt("wgrp", 2)
waits = {}
for i in range(1, 256, WG_):
    waits[gap_of[i] - 1] = WaitRegs([ar(4*(j % NB)) for j in range(i, min(i + WG_, 256)) if j // 32 == i // 32])
vq = []; vrel = []; vdead = []
def vone(items, rel, dead=None): vq.append(items); vrel.append(rel); vdead.append(rel if dead is None else dead)
def vstream(items, rel, dead):
    for grp in groups(items): vone(grp, rel, dead)
def vgroups(gs, rel, dead):
    for grp in gs: vone(grp, rel, dead)
def xnext(bt, rel, dead):
    vstream([WaitRegs([ar(XA+16*(bt-2), 16)])] + x_dma(bt), rel, dead)
pre1 = x_dma(1) + w_dma(1)
lq = []; lrel = []; ldead = []
def ladd(items, rel, dead, step=0):
    for n, it in enumerate(items): lq.append([it]); lrel.append(min(dead, rel + step*n)); ldead.append(dead)

seq = []
def sq(rel, dead, gs): seq.append((rel, dead, gs))
def d_touch(i):
    return [L(f"s_add_u32 s{sWDE}, s{sWDS}, {i*112*1024}\nbuffer_load_dword v{vWd+3}, v{vWd+2}, {srd(WD_)}, s{sWDE} offen")] if (DPF and not ROT2) else []
if opt("late1", 0):
    for n, grp in enumerate(groups(w_dma(1)) + groups(x_dma(1))): sq(0, n // 2, [grp])
    pre1 = []
sq(0, 12, groups([WaitRegs([ar(XA, 16)])] + x_dma(2)))
sq(0, 18 if KVPOS else 23, groups(w_dma(2)))
if KVPOS: sq(0, 23, kv_loads())
sq(bar(1) + 1, bar(1) + 1, [x_read(1)])
if WARMW: sq(bar(1) + 1, bar(1) + 3, [L(f"buffer_load_dword v{t1}, v{vFa}, {srd(W_)}, s{sWM1} offen")])
sq(bar(1) + 4, bar(1) + 10, groups([WaitRegs([ar(XA+16, 16)])] + x_dma(3)))
sq(bar(1) + 1, bar(1) + 22, groups(w_dma(3)))
sq(bar(1) + 20, bar(1) + 24, [x_read(2)])
sq(bar(1) + 24, bar(2), groups([WaitRegs([ar(XA+32, 16)])] + x_dma(4)))
sq(bar(2) + 1, bar(2) + 16, groups(w_dma(4)))
sq(bar(2) + 14, bar(2) + 18, [x_read(3)])
sq(bar(2) + 18, bar(2) + 26, groups([WaitRegs([ar(XA+48, 16)])] + x_dma(5)))
GKS = bar(KVB + 1) + opt("gks", 27)
def kvs_():
    sq(GKS, GKS + 2, kv_stores())
    if WARMD: sq(GKS, GKS + 4, [L(f"v_and_b32 v{t2}, {15*128}, v{vFa}\nbuffer_load_dword v{t1}, v{t2}, {srd(WD_)}, s{sWM2} offen")])
    sq(GKS, GKS + 4, d_touch(0))
if KVB == 1: kvs_()
sq(bar(3) + 4, bar(3) + 8, [x_read(4)])
sq(bar(3) + 1, bar(3) + 16, groups([WaitRegs([ar(XA+64, 16)])] + x_dma(6)))
sq(bar(3) + 1, bar(3) + 26, groups(w_dma(5)))
if KVB == 2: kvs_()
sq(bar(3) + 1, bar(3) + 31, d_touch(1))
sq(bar(4) + 1, bar(4) + 3, [x_read(5)])
KVPUB = opt("kvpub", bar(4) + 4 if KVB == 1 else bar(5))
if KVB == 1: sq(KVPUB, KVPUB, [[WaitTag(vm="kvst")] + flag_store(sKVF)])
sq(bar(4) + 1, bar(4) + 12, groups([WaitRegs([ar(XA+80, 16)])] + x_dma(7)))
sq(bar(4) + 1, bar(4) + 24, groups(w_dma(6)))
sq(bar(4) + 1, bar(4) + 28, ssm_loads())
sq(bar(4) + 28, bar(4) + 30, [x_read(6)])
sq(bar(4) + 28, bar(4) + 31, d_touch(2))
if KVB == 2: sq(KVPUB, KVPUB, [[WaitTag(vm="kvst")] + flag_store(sKVF)])
sq(bar(5) + 1, bar(5) + 16, groups(w_dma(7)))
sq(bar(5) + 22, bar(5) + 24, [x_read(7)])
sq(bar(5) + 22, bar(5) + 25, d_touch(3))
sq(bar(5) + 20, bar(6), groups(wdc_dma(0)))
sq(bar(6) + 1, bar(6) + 1, [unpark("f2", vFa2) + poll_issue(vF2, vFa2, "0")])
KPI = opt("kpi", bar(6) + 2)
sq(KPI, KPI, [poll_issue(vFl, vFa, f"s{sPK}")])
sq(bar(6) + 1, bar(6) + 20, groups(wd_dma(4, 0, "wd0a", 3)))
SPC = opt("spc", bar(6) + 22)
put(bar(6), stampL("k"))
sq(SPC, SPC + 2, [stampL("k") + poll_check(vF2, vFa2, "0") + stampL("k") + L(f"""s_lshl_b32 s{sT1}, s{sFS}, 10
s_add_u32 s{sT1}, s{sT1}, {WS_CS}
v_lshrrev_b32 v{t2}, 2, v{vFa}
buffer_load_dwordx4 {vr(CSA)}, v{t2}, {srd(WS_)}, s{sT1} offen sc1"""),
  L(f"buffer_load_dwordx4 {vr(CSA+4)}, v{t2}, {srd(WS_)}, s{sT1} offen offset:16 sc1"),
  L(f"""s_lshr_b32 s{sT1}, s{sXB}, 6
s_add_u32 s{sT1}, s{sT1}, {WS_ST + 8}
v_lshrrev_b32 v{t2}, 5, v{vL}
v_lshl_add_u32 v{t2}, v{t2}, 24, v{vL16}
buffer_load_dword v110, v{t2}, {srd(WS_)}, s{sT1} offen sc1""")])
KPC = opt("kpc", SPC + 3)
ul = u_loads()
sq(KPC, KPC + 1, [stampL("k") + poll_check(vFl, vFa, f"s{sPK}") + stampL("k") + ul[0], ul[1]])
put(bar(7), stampL("k")); put(gap_of[227] - 3, stampL("k")); put(gap_of[227] + 2, stampL("k")); put(bar(8) - 16, stampL("k")); put(bar(8), stampL("k"))
sq(bar(7) + 1, bar(8) - 8, groups(wd_dma(4, 8192, "wd0b", 7)))
for rel, dead, gs in seq:
    for grp in gs: vone(grp, rel, dead)
ladd(kv_reads(), bar(KVB) + 1, bar(KVB) + 6)
ladd(kv_compute(), bar(KVB) + 5, GKS - 1)
tbl = tab_zero() + tab_build()
ladd(tbl[:22], bar(6) + 4, bar(7) - 8, 1)
ladd([WaitTag(vm="wdc0")] + wd_reads(0, 3, 0, vDr), bar(7) - 7, bar(7) - 3)
ladd(L("\n".join(f"v_mov_b32 v{r}, 0" for r in [108, 109, 111, 112, 113, 114, 115, 116, 118, 119])), bar(7) + 1, gap_of[227] - 3)
ladd(L("v_mov_b32 v117, v110"), gap_of[227] - 2, gap_of[227] - 2)
ladd(tbl[22:], gap_of[227], bar(8) - 14, 1)
ladd(u_writes(), bar(8) - 15, bar(8) - 2, 2)
XD = opt("x_drop", "").split(",")
def keep(it):
    return not (isinstance(it, Ins) and it.kind == 'vmem' and it.tag and any(it.tag.startswith(p) for p in XD if p))
vq = [[it for it in g_ if keep(it)] for g_ in vq]
SC.flex(vq, vrel, vdead, pace=opt("pace", 2))
SC.flex(lq, lrel, ldead)
def epi1(ti, pk=False):
    o = []
    b = ACC + 16*ti
    for r in range(8): o += L(f"v_max_f32 v{b+r}, 0, v{b+r}")
    if pk:
        for r in range(0, 8, 2): o += L(f"v_pk_mul_f32 {pr(b+r)}, {pr(b+r)}, {pr(b+8+r)}")
    else:
        for r in range(8): o += L(f"v_mul_f32 v{b+r}, v{b+r}, v{b+8+r}")
    for m in range(4): o += L(f"v_cvt_pk_bf16_f32 v{b+8+m}, v{b+2*m}, v{b+2*m+1}")
    so = sHB if ti < 4 else sT2
    o += L(f"buffer_store_dwordx4 {vr(b+8)}, v{vL16}, {srd(WS_)}, s{so} offen offset:{1024*(ti&3)} sc1", tag="hst")
    return o
for g, wv in waits.items(): SC.pin(g, [wv])
fill, bud = SC.solve(lo=5.9, hi=6.01)
print("gemm1 budget", bud, file=sys.stderr)
for g, wv in waits.items():
    fill[g].remove(wv); fill[g].append(wv)
def cnt(f, g): return len([x for x in f[g] if not (isinstance(x, Ins) and x.kind == 'label')])
tail = []
g = 0
for ti in range(8):
    g = max(g, 224 + 5*ti + 4 + 2)
    ops = epi1(ti, pk=(g >= NM))
    for op in ops:
        while g < NM and cnt(fill, g) >= opt("ebud", 7): g += 1
        if g < NM: fill[g].append(op)
        else: tail.append(op)
S.append(State('save', 'split'))
A(f"s_add_u32 s{sT2}, s{sHB}, 4096")
S.append(WaitTag(vm="x0"))
S.extend(pre1)
S.extend(pre)
stamp(); stamp("a"); stamp("a"); stamp("a"); stamp("a")
S.extend(weave(main, fill))
stamp(); stamp("g")

vCa, vCb, vCu = 1, 2, 3
vTd = [4, 5]
vY8, vXc = 6, 7
FB = [64, 128]
CQ = [8, 12, 16, 20, 48, 52, 56, 60]
def creads(z):
    r_ = []
    b = FB[z & 1]
    for r in range(8):
        r_ += L(f"ds_read_b128 {vr(b+4*r)}, v{vCa} offset:{192 + 512*r - 64*z}")
        r_ += L(f"ds_read_b128 {vr(b+32+4*r)}, v{vCb} offset:{3776 - 512*r - 64*z}")
    return r_
def conv_entry():
    return unpark("ca", vCa) + unpark("cb", vCb) + unpark("cu", vCu) + unpark("td0", vTd[0]) + unpark("td1", vTd[1]) + unpark("fh", vFa) + creads(0)
S.extend(conv_entry())
S.extend(tail)
NS1 = nstamp

AP = []
def AA(t, tag=None): AP.extend(L(t, tag))
AA("L_apath:")
sTA, sFA = sXB, sXS
AA(f"""s_lshr_b32 s{sFA}, s{sRB}, 1
s_min_u32 s{sFA}, s{sFA}, 6
s_add_u32 s{sFA}, s{sFA}, s{sFS}
s_sub_u32 s{sFA}, s{sFA}, 7
s_mov_b32 s{sHF}, {WS_EP + 0x800}
v_lshrrev_b32 v2, 4, v{vL}
v_mul_u32_u24 v2, 3584, v2
v_and_b32 v3, 15, v{vL}
v_lshl_add_u32 v2, v3, 4, v2
s_mul_i32 s{sT0}, s{sW}, {128*3584}
s_lshl_b32 s{sT1}, s{sFA}, 8
s_add_u32 s{sT0}, s{sT0}, s{sT1}""")
AP.insert(1, State('setvm', AEARLY + (flat(kv_loads()) if KVPOS == 0 else [])))
if KVPOS: AP[2:2] = flat(kv_loads())
if PROF and "a" in SEL: AP.extend(stampI(1))
def cs_load(n): return L(f"buffer_load_dwordx4 {vr(128 + 4*n)}, v2, {srd(W_)}, s{sT0} offen\ns_add_u32 s{sT0}, s{sT0}, {4*3584}")
AA(f"s_mov_b32 s{sT1}, 0x3f803f80")
for rg in range(2):
    for r in range(32):
        x = 64 + 32*rg + r
        a1 = 4 + 4*rg + (r & 1); a2 = a1 + 2
        if r % 8 == 0: AP.extend(cs_load(4*rg + r // 8))
        AA(f"v_dot2_f32_bf16 v{a1}, v{x}, s{sT1}, {'0' if r < 2 else 'v%d' % a1}\nv_dot2_f32_bf16 v{a2}, v{x}, v{x}, {'0' if r < 2 else 'v%d' % a2}")
AP.append(WaitTag(vm="kv"))
AA("s_barrier")
AP.extend(kv_reads())
for a in (4, 6, 8, 10): AA(f"v_add_f32 v{a}, v{a}, v{a+1}")
for mod in ("quad_perm:[1,0,3,2]", "quad_perm:[2,3,0,1]", "row_half_mirror"):
    for a in (4, 6, 8, 10): AA(f"v_add_f32_dpp v{a}, v{a}, v{a} {mod} row_mask:0xf bank_mask:0xf")
for rg in range(2):
    m, v_, o = 4 + 4*rg, 6 + 4*rg, 12 + 4*rg
    AA(f"""v_mul_f32 v{m}, 0xbb000000, v{m}
v_mul_f32 v{v_}, 0x3b000000, v{v_}
v_fma_f32 v{v_}, -v{m}, v{m}, v{v_}
v_max_f32 v{v_}, 0, v{v_}
{rnd(v_)}
v_cvt_pk_bf16_f32 v{o+2}, v{m}, v{m}
v_lshlrev_b32 v{m}, 16, v{o+2}
v_add_f32 v{v_}, 0x3727c5ac, v{v_}
{rnd(v_)}
v_sqrt_f32 v{v_}, v{v_}
{rnd(v_)}
v_rcp_f32 v{o}, v{v_}
v_mul_f32 v{o+1}, v{m}, v{o}
v_mul_f32 v{o+3}, v{o}, v{o}""")
AA(f"""v_and_b32 v3, 7, v{vL}
v_lshlrev_b32 v3, 24, v3
v_lshl_add_u32 v3, v{vL}, 1, v3
s_lshl_b32 s{sT1}, s{sTA}, 8
s_add_u32 s{sT1}, s{sT1}, {WS_ST}
buffer_store_dwordx4 v[12:15], v3, {srd(WS_)}, s{sT1} offen sc1
buffer_store_dwordx4 v[16:19], v3, {srd(WS_)}, s{sT1} offen offset:128 sc1""", tag="stst")
kc = kv_compute()
for n, it in enumerate(kc):
    if n % 12 == 0 and 8 + n // 12 < 20: AP.extend(cs_load(8 + n // 12))
    AP.append(it)
AP.extend(flat(kv_stores()))
AP.append(WaitTag(vm="stst"))
AA(f"s_lshl_b32 s{sTA}, s{sTA}, 7\ns_add_u32 s{sTA}, s{sTA}, {WS_SF}")
AP.extend(flag_store(sTA))
if PROF and "a" in SEL: AP.extend(stampI(2))
AA(f"s_mov_b32 s{sT1}, 0x3f80\ns_mov_b32 s{sT2}, 0x3f800000")
for n in range(32):
    if n < 12: AP.extend(cs_load(20 + n))
    for r in range(4):
        x = 128 + 4*n + r
        AA(f"v_dot2_f32_bf16 v{100+2*r}, v{x}, s{sT1}, {'0' if n == 0 else 'v%d' % (100+2*r)}\nv_dot2_f32_bf16 v{101+2*r}, v{x}, s{sT2}, {'0' if n == 0 else 'v%d' % (101+2*r)}")
    if n == 20:
        AP.append(WaitTag(vm="kvst"))
        AP.extend(flag_store(sKVF))
AA(f"""s_lshl_b32 s{sT1}, s{sW}, 11
v_lshl_add_u32 v2, v{vL}, 5, s{sT1}
ds_write_b128 v2, v[100:103]
ds_write_b128 v2, v[104:107] offset:16""")
AP.extend(flat(ssm_loads()))
AP.append(WaitTag(lgkm0=True))
AA("s_barrier")
AA(f"""s_and_b32 s{sT1}, s{sW}, 1
s_lshl_b32 s{sT1}, s{sT1}, 6
v_add_u32 v2, s{sT1}, v{vL}
v_lshlrev_b32 v3, 2, v2""")
for n in range(16): AA(f"ds_read_b32 v{128+n}, v3 offset:{512*n}")
for st in (8, 4, 2, 1):
    for n in range(st): AA(f"v_add_f32 v{128+n}, v{128+n}, v{128+st+n}")
AA(f"""v_cvt_pk_bf16_f32 v129, v128, v128
v_lshlrev_b32 v129, 16, v129
v_sub_f32 v129, v128, v129
v_cvt_pk_bf16_f32 v128, v128, v129
v_and_b32 v3, 15, v2
v_lshlrev_b32 v3, 5, v3
v_lshrrev_b32 v2, 4, v2
v_lshl_add_u32 v3, v2, 2, v3
s_lshr_b32 s{sT1}, s{sW}, 1
s_lshl_b32 s{sT1}, s{sT1}, 24
v_add_u32 v3, s{sT1}, v3
s_and_b32 s{sT0}, s{sRB}, 1
s_lshl_b32 s{sT1}, s{sFA}, 1
s_add_u32 s{sT0}, s{sT0}, s{sT1}
s_lshl_b32 s{sT1}, s{sT0}, 9
s_add_u32 s{sT1}, s{sT1}, {WS_CS}
buffer_store_dword v128, v3, {srd(WS_)}, s{sT1} offen sc1
s_lshl_b32 s{sT0}, s{sT0}, 7
s_add_u32 s{sT0}, s{sT0}, {WS_SF + 0x4000}""")
AP.append(WaitTag(vm0=True, lgkm0=True))
AA("s_barrier")
AP.extend(flag_store(sT0))
if PROF and "a" in SEL: AP.extend(stampI(3))
AP.extend(wdc_dma(0) + wd_dma(4, 0, "wd0a", 3) + wd_dma(4, 8192, "wd0b", 7))
AP.extend(poll_issue(vFl, vFa, f"s{sPK}"))
AP.extend(tab_zero() + tab_build())
AP.extend([WaitTag(vm="wdc0")] + wd_reads(0, 3, 0, vDr) + [WaitTag(lgkm0=True)])
AA("s_barrier")
AP.extend(poll_check(vFl, vFa, f"s{sPK}") + flat(u_loads()) + u_writes())
AP.append(WaitTag(vm0=True, lgkm0=True))
AA("s_barrier")
AP.extend(conv_entry())
for n in range(NS0 + (3 if "a" in SEL else 0), NS1): AP.extend(stampI(n))
AP.append(WaitTag(lgkm0=True))
AA("s_branch L_conv")

A("L_conv:")
stamp(); stamp("c")
HRING = list(range(192, 256, 4)) + list(range(64, 128, 4)) + [48, 52, 56, 60]
NH = len(HRING)
NHE = 16
AC2 = 128
def h_load(n):
    tt, ks = n // 28, n % 28
    if not ROT2:
        o = L(f"buffer_load_dwordx4 {vr(HRING[n % NH])}, v{vL16}, {srd(WS_)}, s{sHO} offen offset:{1024*(ks%4)} sc1")
        if ks % 4 == 3: o += L(f"s_add_u32 s{sHO}, s{sHO}, {4096 if n != 27 else 4096 + 84*1024}")
        if HPF and n % HPG == HPG - 1 and n + 1 + HPD < 56: o += h_touch((n + 1 + HPD) // HPG)
        return o
    o = L(f"buffer_load_dwordx4 {vr(HRING[n % NH])}, v{vL16}, {srd(WS_)}, s{sHO} offen offset:{1024*(ks%2)} sc1")
    if ks % 2 == 1:
        o += L(f"""s_add_u32 s{sHO}, s{sHO}, 2048
s_cmp_eq_u32 s{sHO}, s{sHE}
s_cselect_b32 s{sHO}, s{sHS}, s{sHO}""")
    if n == 27: o += L(f"s_add_u32 s{sHO}, s{sHO}, {112*1024}\ns_add_u32 s{sHS}, s{sHS}, {112*1024}\ns_add_u32 s{sHE}, s{sHE}, {112*1024}")
    return o
HPG = 7
HPD = opt("hpd", 7)
vHt, vHd = 28, 29
def h_touch(gi):
    off = (gi // 4) * 112 * 1024 + (gi % 4) * 7 * 1024
    return L(f"s_add_u32 s{sHE}, s{sHS}, {off}\nbuffer_load_dword v{vHd}, v{vHt}, {srd(WS_)}, s{sHE} offen sc1")
mm = []
pairs = sorted([(r, q - r, q) for q in range(8) for r in range(q + 1)], key=lambda x: (max(x[0], x[1]), x[2]))
C2 = Sched(144)
seenq = set()
for z in range(4):
    b = FB[z & 1]
    for r, p, q in pairs:
        c = vr(CQ[q]) if q in seenq else "0"
        seenq.add(q)
        mm.append(Ins(f"v_mfma_f32_16x16x32_bf16 {vr(CQ[q])}, {vr(b+4*r)}, {vr(b+32+4*p)}, {c}"))
    if z < 3:
        for n, it in enumerate(creads(z + 1)): C2.pin(36*z + 1 + 2*n, [it])
cq = []; crel = []
def cadd(items, rel, dma=False, step=0):
    for n, grp in enumerate(groups(items) if dma else [[x] for x in items]): cq.append(grp); crel.append(rel + step*n)
HPUB = opt("hpub", 16)
HPI = opt("hpi", 110)
HPC = opt("hpc", 136)
def wregs(k0, n): return [ar(wda(k), 8) for k in range(k0, k0 + n)]
cadd([WaitTag(vm="wd0a")] + wd_reads(3, 4, 0, vTd), 0)
cadd(wd_dma(4, 16384, "wd0c", 11), 0, True)
cadd([WaitTag(vm="wd0b")] + wd_reads(7, 4, 8192, vTd), 0)
C2.pin(HPUB, stampL("c") + [WaitTag(vm="hst")] + flag_store(sHF) + stampL("c"))
cadd([WaitRegs(wregs(3, 4))] + wd_dma(4, 0, "wd1a", 15), 0, True)
cadd([WaitRegs(wregs(7, 4))] + wd_dma(4, 8192, "wd1b", 19), 0, True)
cadd([WaitTag(vm="wd0c")] + wd_reads(11, 4, 16384, vTd), 0)
cadd([WaitRegs(wregs(11, 4))] + wd_dma(4, 16384, "wd1c", 23), 0, True)
cadd([WaitTag(vm="wd1a")] + wd_reads(15, 1, 0, vTd), 0)
cadd([WaitRegs(wregs(15, 1))] + wd_dma(1, 0, "wd2", 27), 0, True)
cq.append(poll_issue(vFl, vFa, f"s{sPH}")); crel.append(HPI)
cq.append(stampL("c") + poll_check(vFl, vFa, f"s{sPH}") + stampL("c")); crel.append(HPC)
if HPF and not ROT2:
    cq.insert(len(cq) - 1, unpark("ht", vHt)); crel.insert(len(crel) - 1, 0)
    for gi in range(1 + HPD // HPG): cq.append(h_touch(gi)); crel.append(HPC)
NHC = opt("nhc", 4)
for n in range(NHC): cq.append(h_load(n)); crel.append(HPC + 2*n)
C2.flex(cq, [min(r, 143) for r in crel], 143)
f2, bud = C2.solve(lo=1.0, hi=4.0, free=1.5)
print("conv budget", bud, file=sys.stderr)
S.extend(weave(mm, f2))
stamp(); stamp("c")

mm = []
for tt in range(2):
    for ks in range(28):
        n = 28*tt + ks
        for dt in range(2):
            a = vr(AC2 + 32*tt + 16*dt, 16)
            c = "0" if ks == 0 else a
            mm.append(Ins(f"v_mfma_f32_32x32x16_bf16 {a}, {ar(wda(ks)+4*dt)}, {vr(HRING[n % NH])}, {c}"))
for n in range(NHC, NHE): S.extend(h_load(n))
A(f"""s_lshl_b32 s{sT1}, s{sW}, 12
s_add_u32 s{sT1}, s{sT1}, {XCH}
v_add_u32 v{vXc}, s{sT1}, v{vL16}
v_lshlrev_b32 v{vY8}, 3, v{vL}""")
for n in range(4): A(f"ds_read_b64 {pr(40+2*n)}, v{vCu} offset:{4088 - 504 - 2048 - 512*n}")
S.append(WaitTag(lgkm0=True))
A("s_barrier")
A(f"s_bitcmp1_b32 s{sW}, 0\ns_cbranch_scc1 L_xB")
S.append(State('save', 'x'))
for n in range(4): A(f"ds_write_b128 v{vXc}, {vr(CQ[4+n])} offset:{1024*n}")
A("s_branch L_xE\nL_xB:")
S.append(State('save', 'xA'))
S.append(State('restore', 'x'))
for n in range(4): A(f"ds_write_b128 v{vXc}, {vr(CQ[n])} offset:{1024*n}")
for n in range(16): A(f"v_mov_b32 v{8+n}, v{48+n}")
A("L_xE:")
S.append(State('restore', 'xA'))
A(f"v_xor_b32 v{vXc}, 0x1000, v{vXc}")
cf = []
for n in range(4):
    a = 8 + 4*n; t = 40 + 2*n
    cf += L(f"""v_and_b32 v24, s{sHI}, v{t+1}
v_lshlrev_b32 v25, 16, v{t+1}
v_and_b32 v26, s{sHI}, v{t}
v_lshlrev_b32 v27, 16, v{t}""")
    for r in range(4): cf += L(f"v_fma_f32 v{a+r}, s{sD}, v{24+r}, v{a+r}")
cf2 = []
for n in range(4):
    a = 8 + 4*n; t = 40 + 2*n
    for r in range(4): cf2 += L(f"v_add_f32 v{a+r}, v{a+r}, v{48+4*n+r}")
    cf2 += L(f"v_cvt_pk_bf16_f32 v{t}, v{a}, v{a+1}\nv_cvt_pk_bf16_f32 v{t+1}, v{a+2}, v{a+3}")
    cf2 += L(f"buffer_store_dwordx2 {pr(t)}, v{vY8}, {srd(WS_)}, s{sYB} offen offset:{512*n} sc1", tag="yst")
S.extend(cf)
S.append(WaitTag(lgkm0=True))
A("s_barrier")
for n in range(4): A(f"ds_read_b128 {vr(48+4*n)}, v{vXc} offset:{1024*n}")
S.extend(cf2)
stamp("c")
G2 = Sched(112)
hq = []; hrel = []
for n in range(NHE, 56):
    hq.append(h_load(n))
    hrel.append(max(0, 2*(n - NH) + 2))
G2.flex(hq, hrel, [max(r, (n - NHE)) + 2 for n, r in zip(range(NHE, 56), hrel)], pace=1)
vPW, vPR0, vPR1, vY2, vXo = 8, 9, 10, 11, 12
XT = 16
STT = [24, 36]
gq = []; grel = []; gdead = []
def gadd(items, rel, unit=False, dead=111):
    if unit: gq.append(items); grel.append(rel); gdead.append(dead)
    else:
        for x in items: gq.append([x]); grel.append(rel); gdead.append(dead)
gadd(unpark("fs", 13) + poll_issue(14, 13, "0"), 0)
gadd(unpark("pw", vPW) + unpark("pr", vPR0) + unpark("y2r", vY2) + unpark("xo", vXo) + unpark("yo", 7) + unpark("y1w", 1) + unpark("y1r", 2) + unpark("y2w", 3), 0)
gadd(wd_reads(16, 3, 2048, vTd), 0, dead=26)
gadd([WaitTag(vm="wd1b")] + wd_reads(19, 4, 8192, vTd), 0, dead=32)
gadd([WaitTag(vm="wd1c")] + wd_reads(23, 4, 16384, vTd) + [WaitTag(vm="wd2")] + wd_reads(27, 1, 0, vTd), 0, dead=40)
YPUB = opt("ypub", 24)
gadd([WaitTag(vm="yst")] + flag_store(sYF) + stampL("c"), YPUB, True)
gadd(poll_check(14, 13, "0"), YPUB, True)
gadd(L(f"""v_add_u32 v{vPR1}, {2*RP}, v{vPR0}
s_add_u32 s{sT2}, s{sO0}, 32768
buffer_load_dwordx4 {vr(XT)}, v{vXo}, {srd(X_)}, s{sO0} offen
buffer_load_dwordx4 {vr(XT+4)}, v{vXo}, {srd(X_)}, s{sT2} offen
v_lshrrev_b32 v15, 3, v{vL}
v_lshlrev_b32 v15, 4, v15
buffer_load_dwordx4 {vr(STT[0])}, v15, {srd(WS_)}, s{sSTR} offen sc1
buffer_load_dwordx4 {vr(STT[1])}, v15, {srd(WS_)}, s{sSTR} offen offset:512 sc1
v_and_b32 v{vFa}, 15, v{vL}
v_lshlrev_b32 v{vFa}, 7, v{vFa}"""), YPUB)
def pwrites(tt):
    o = []
    for dt in range(2):
        for m in range(4):
            o += L(f"ds_write_b128 v{vPW}, {vr(AC2 + 32*tt + 16*dt + 4*m)} offset:{32*tt*PP + 128*dt + 32*m}")
    return o
YPI = opt("ypi", 58)
gadd(poll_issue(vFl, vFa, f"s{sPY}"), YPI, True)
for n, it in enumerate(pwrites(0)): gadd([it], 59 + 2*n)
YCK = opt("yck", 78)
gadd(stampL("c") + poll_check(vFl, vFa, f"s{sPY}") + stampL("c") + L(f"buffer_load_dwordx4 v[40:43], v7, {srd(WS_)}, s{sYT} offen sc1"), YCK, True)
gadd(L(f"s_add_u32 s{sYT}, s{sYT}, 32768\nbuffer_load_dwordx4 v[44:47], v7, {srd(WS_)}, s{sYT} offen sc1"), YCK, True)
def fin_pre(p, t):
    o = []
    xs = XT + 4*p; rs = STT[p]
    for m in range(4):
        o += L(f"v_lshlrev_b32 v{t+2*m}, 16, v{xs+m}\nv_and_b32 v{t+2*m+1}, s{sHI}, v{xs+m}")
    for e in range(8): o += L(f"v_fma_f32 v{t+8+e}, v{t+e}, v{rs}, v{rs+1}")
    o += L(f"v_mov_b32 v{rs+2}, v{rs+3}")
    return o
FT = [128, 144]
gadd([WaitTag(lgkm0=True)] + fin_pre(0, FT[0]) + fin_pre(1, FT[1]), YCK)
YW = opt("yw", 100)
gadd(L(f"ds_write_b128 v1, v[40:43]\nds_write_b128 v1, v[44:47] offset:{8*YP}"), YW)
gadd(sum([L(f"ds_read_b64_tr_b16 v[{40+2*j}:{41+2*j}], v2 offset:{4*j*YP}") for j in range(4)], []), YW + 2)
gadd(L(f"ds_write_b128 v3, v[40:43]\nds_write_b128 v3, v[44:47] offset:16"), YW + 6)
G2.flex(gq, grel, gdead)
f3, bud = G2.solve(lo=5.0, hi=6.1, free=6)
print("gemm2 budget", bud, file=sys.stderr)
S.extend(weave(mm, f3))
stamp(); stamp("c")
def fin_reads(p, b):
    o = []
    for w in range(4):
        for hh in range(2):
            o += L(f"ds_read_b128 {vr(b + 8*w + 4*hh)}, v{vPR0 + (w>>1)} offset:{(w&1)*RP + 32*p*PP + 16*hh}")
    return o
def fin_math(p, b, ys, t):
    o = []
    u = 192 + 8*p
    for m in range(4):
        o += L(f"v_lshlrev_b32 v{u+2*m}, 16, v{ys+m}\nv_and_b32 v{u+2*m+1}, s{sHI}, v{ys+m}")
    for e in range(0, 8, 2): o += L(f"v_pk_fma_f32 {pr(t+e)}, {pr(t+8+e)}, {pr(u+e)}, {pr(t+e)}")
    for e in range(0, 8, 2):
        o += L(f"v_pk_add_f32 {pr(b+e)}, {pr(b+e)}, {pr(b+8+e)}")
    for e in range(0, 8, 2):
        o += L(f"v_pk_add_f32 {pr(b+16+e)}, {pr(b+16+e)}, {pr(b+24+e)}")
    for e in range(0, 8, 2): o += L(f"v_pk_add_f32 {pr(b+e)}, {pr(b+e)}, {pr(b+16+e)}")
    for e in range(0, 8, 2): o += L(f"v_pk_fma_f32 {pr(b+e)}, {pr(b+e)}, {pr(STT[p]+2)}, {pr(t+e)}")
    for m in range(4): o += L(f"v_cvt_pk_bf16_f32 v{b+8+m}, v{b+2*m}, v{b+2*m+1}")
    o += L(f"buffer_store_dwordx4 {vr(b+8)}, v{vXo}, {srd(OUT_)}, s{sO0 if p == 0 else sT2} offen")
    return o
S.append(WaitTag(lgkm0=True))
A("s_barrier")
S.extend(L(f"ds_read_b128 {vr(112)}, v{vY2} offset:0") + fin_reads(0, 48) + L(f"ds_read_b128 {vr(116)}, v{vY2} offset:{32*Y2P}"))
S.extend(pwrites(1))
S.extend(fin_math(0, 48, 112, FT[0]))
S.append(WaitTag(lgkm0=True))
A("s_barrier")
S.extend(fin_reads(1, 80))
S.extend(fin_math(1, 80, 116, FT[1]))
A(f"""s_or_b32 s{sT1}, s{sB}, s{sW}
s_cmp_lg_u32 s{sT1}, 0
s_cbranch_scc1 L_noep
v_and_b32 v1, 31, v{vL}
v_lshrrev_b32 v2, 5, v{vL}
v_lshlrev_b32 v1, 7, v1
v_lshl_add_u32 v1, v2, 14, v1
s_mov_b32 s4, {WS_KF}
s_mov_b32 s5, {WS_KF + 0x8000}
s_mov_b32 s6, {WS_KF + 0x10000}
s_mov_b32 s7, {WS_KF + 0x18000}
s_mov_b32 s{sCNT}, 0x40000
L_ep:
buffer_load_dword v4, v1, {srd(WS_)}, s4 offen sc1
buffer_load_dword v5, v1, {srd(WS_)}, s5 offen sc1
buffer_load_dword v6, v1, {srd(WS_)}, s6 offen sc1
buffer_load_dword v7, v1, {srd(WS_)}, s7 offen sc1
s_waitcnt vmcnt(0)
v_xor_b32 v4, s{sTAG}, v4
v_xor_b32 v5, s{sTAG}, v5
v_xor_b32 v6, s{sTAG}, v6
v_xor_b32 v7, s{sTAG}, v7
v_or_b32 v4, v4, v5
v_or3_b32 v4, v4, v6, v7
v_cmp_ne_u32 vcc, 0, v4
s_sub_u32 s{sCNT}, s{sCNT}, 1
s_cbranch_scc1 L_epw
s_cbranch_vccnz L_ep
L_epw:
s_mov_b32 s{sT1}, {WS_EP}
buffer_store_dword v{vTg}, v{vZ}, {srd(WS_)}, s{sT1} offen sc1
L_noep:""")
LEAK = opt("leak", -1)
if PROF and LEAK >= 0:
    S.append(WaitTag(vm0=True))
    A("s_memrealtime s[0:1]")
    S.append(WaitTag(lgkm0=True))
    A(f"""s_sub_u32 s4, s{STP[LEAK] if LEAK else 0}, s{sRT}
s_lshl_b32 s4, s4, 2
s_min_u32 s4, s4, 100000
s_cmp_ge_u32 s{sB}, 224
s_cselect_b32 s4, 0, s4
L_leak:
s_memrealtime s[6:7]
s_waitcnt lgkmcnt(0)
s_sub_u32 s6, s6, s0
s_cmp_lt_u32 s6, s4
s_cbranch_scc1 L_leak""")
    PROF = False
if PROF:
    S.append(WaitTag(vm0=True))
    stamp("end")
    A(f"s_memrealtime s[0:1]")
    S.append(WaitTag(lgkm0=True))
    for n in range(13): A(f"v_mov_b32 v{16+n}, " + (f"s{STP[n]}" if n < nstamp else "0"))
    A(f"v_mov_b32 v29, s{sRT}\nv_mov_b32 v30, s0")
    A(f"s_getreg_b32 s{sT1}, hwreg(HW_REG_XCC_ID)\nv_mov_b32 v31, s{sT1}")
    A(f"""s_lshl_b32 s{sT0}, s{sB}, 2
s_add_u32 s{sT0}, s{sT0}, s{sW}
s_lshl_b32 s{sT0}, s{sT0}, 6
s_add_u32 s{sT0}, s{sT0}, {WS_PR}
v_mov_b32 v1, 0
buffer_store_dwordx4 v[16:19], v1, {srd(WS_)}, s{sT0} offen
buffer_store_dwordx4 v[20:23], v1, {srd(WS_)}, s{sT0} offen offset:16
buffer_store_dwordx4 v[24:27], v1, {srd(WS_)}, s{sT0} offen offset:32
buffer_store_dwordx4 v[28:31], v1, {srd(WS_)}, s{sT0} offen offset:48""")
A("L_end:\ns_endpgm")

S.append(State('restore', 'split'))
S.extend(AP)
body = finalize(S, verbose=False)
hdr = open("cdna_kernels/" + NAME + ".s.ref").read().split("; Override launch geometry")[0]
txt = hdr + f"; @launch grid=(256,1,1) block=(256,1,1) lds={LDS_SIZE}\n"
txt += f""".amdgcn_target "amdgcn-amd-amdhsa--gfx950"
.text
.globl {NAME}_kernel
.p2align 8
.type {NAME}_kernel,@function
{NAME}_kernel:
"""
code = ""
for i in body + SLOW:
    code += ("" if i.kind == 'label' else "    ") + i.text + "\n"
    if i.op == "s_getpc_b64": code += "L_pc:\n"
code = code.replace("CODE_LAST", "L_slow0-L_pc")
txt += code
txt += f""".section .rodata,"a"
.p2align 6
.amdhsa_kernel {NAME}_kernel
  .amdhsa_next_free_vgpr 512
  .amdhsa_next_free_sgpr 102
  .amdhsa_accum_offset 256
  .amdhsa_group_segment_fixed_size 0
  .amdhsa_kernarg_size 104
  .amdhsa_user_sgpr_count 2
  .amdhsa_user_sgpr_kernarg_segment_ptr 1
  .amdhsa_system_sgpr_workgroup_id_x 1
  .amdhsa_float_denorm_mode_32 3
  .amdhsa_float_denorm_mode_16_64 3
.end_amdhsa_kernel
"""
out = [a for a in sys.argv[1:] if not a.startswith("--")]
open(out[0] if out else "cdna_kernels/" + NAME + ".s", "w").write(txt)
print("instrs:", len(body), file=sys.stderr)
```

```python
import sys
from collections import defaultdict
from asmlib import *

NAME = "parallel_sum__ssm_conv_h3__glu_gated_reglu__prompt"
PROF = "--prof" in sys.argv
def opt(name, dflt):
    for a in sys.argv:
        if a.startswith(f"--{name}="): return type(dflt)(a.split("=")[1])
    return dflt
CODEPF = opt("codepf", 1)
WARM = opt("warm", 1)
ROT2 = opt("rot2", 0)
HPF = opt("hpf", 0)
DPF = opt("dpf", 0)
ROTW = opt("rotw", 0)
KVPOS = opt("kvpos", 1)
WARMW = opt("warmw", 1)
WARMD = opt("warmd", 1)
SLEEP = opt("sleep", 3)
NTX = " nt" if opt("ntx", 0) else ""
NTK = " nt" if opt("ntk", 1) else ""
NTW = " nt" if opt("ntw", 0) else ""
NTD = " nt" if opt("ntd", 0) else ""

WS_H  = 0x000000
WS_KV = 0x800000
WS_Y  = 0xA00000
WS_ST = 0xC00000
WS_CS = 0xC10000
WS_SF = 0xC20000
WS_EP = 0xC43000
WS_PR = 0xC50000
WS_KF = 0xC60000
WS_HF = 0xC80000
WS_YF = 0xCA0000
WS_SIZE = 0xD00000
RP = 24704
HT = 4 * RP
HP = 4512
UA = HT + 8 * HP
UP = 4224
KS_K = UA
YS = UA + 17408
XS = HT
XCH = HT
DS = UA
DSP = 7168
LDS_SIZE = 163840
sB, sW = 2, 3
sRB, sFS, sTT, sDT, sROT = 4, 5, 6, 7, 8
sT0, sT1, sT2 = 9, 10, 11
sTAG, sD, sR, sHI, sCNT = 12, 13, 14, 15, 16
sXB, sXS = 17, 18
sK0, sK1, sK2, sK3, sK4, sH3 = 19, 20, 21, 22, 23, 28
sWG, sWU = 24, 26
sEX = 30
sWS = [32, 33, 34, 35, 36, 37, 38, 39]
sWDO, sWDE, sWDS = 40, 41, 42
sHB = 43
sKVS, sKVF, sDS, sWM1, sWM2 = 80, 81, 82, 83, 84
sPK, sPH, sPY = 85, 86, 87
sHF, sHO, sHE, sHS = 24, 25, 26, 27
sYB, sYF, sO0, sSTR, sYT = 0, 1, 29, 30, 31
def srd(n): return f"s[{n}:{n+3}]"
X_, K_, V_, SH_, SSM_, W_, WD_, OUT_, WS_ = 44, 48, 52, 56, 60, 64, 68, 72, 76
sRT = 88
STP = [90, 92, 94, 96, 98, 100] + [48, 50, 52, 54, 56, 58, 20]

S = []
SLOW = []
def L(t, tag=None):
    return [Ins(line.strip(), tag) for line in t.split('\n') if line.strip()]
def A(t, tag=None): S.extend(L(t, tag))
def vr(a, n=4): return f"v[{a}:{a+n-1}]"
def ar(a, n=4): return f"a[{a}:{a+n-1}]"
def pr(a): return f"v[{a}:{a+1}]"
nstamp = 0
SEL = opt("stamps", "main").split(",")
def stampI(n): return L(f"{'s_memrealtime' if opt('rt', 1) else 's_memtime'} s[{STP[n]}:{STP[n]+1}]")
def stampL(name="main"):
    global nstamp
    if PROF and (name in ("start", "end") or name in SEL):
        nstamp += 1
        return stampI(nstamp - 1)
    return []
def stamp(name="main"): S.extend(stampL(name))

def groups(items):
    gs = []; cur = []
    for it in items:
        cur.append(it)
        if isinstance(it, Ins) and it.kind == 'vmem': gs.append(cur); cur = []
    if cur:
        if gs: gs[-1].extend(cur)
        else: gs.append(cur)
    return gs

npoll = 0
def poll_issue(vF, vAddr, soff):
    return L(f"buffer_load_dword v{vF}, v{vAddr}, {srd(WS_)}, {soff} offen sc1")
def poll_check(vF, vAddr, soff):
    global npoll
    n = npoll; npoll += 1
    o = L(f"v_cmp_ne_u32 vcc, s{sTAG}, v{vF}\ns_cbranch_vccnz L_slow{n}\nL_back{n}:")
    SLOW.extend(L(f"""L_slow{n}:
s_mov_b32 s{sCNT}, 0x40000
L_spin{n}:
buffer_load_dword v{vF}, v{vAddr}, {srd(WS_)}, {soff} offen sc1
s_waitcnt vmcnt(0)
v_cmp_ne_u32 vcc, s{sTAG}, v{vF}
s_sub_u32 s{sCNT}, s{sCNT}, 1
s_cbranch_scc1 L_back{n}
s_nop 1
s_cbranch_vccz L_back{n}
s_sleep {SLEEP}
s_branch L_spin{n}"""))
    return o
def flag_store(soff): return L(f"buffer_store_dword v{vTg}, v{vZ}, {srd(WS_)}, s{soff} offen sc1")

vL = 0
vXr = [1, 2, 3, 4]
vWo = list(range(5, 13))
vT = list(range(13, 21))
t0, t1, t2 = 21, 22, 23
vKm, vKv, vKhh, vHa = 24, 25, 26, 27
vUz, vUw, vKs, vTg, vZ, vL16, vFl, vFa = 28, 29, 30, 31, 32, 33, 34, 35
vWd = 36
vKo = 40
vKa, vKb, vKh, vSh = 40, 41, 42, 43
vSK = 44
vXg = [48, 49, 50, 51]
vDr = [52, 53]
vA8, vC8, t3 = 54, 55, 56
vF2, vFa2 = 126, 127
ACC = 128
XA = 96
def acc(ti): return vr(ACC + 16*ti, 16)
PARK = {}
def park(name, v):
    PARK[name] = 224 + len(PARK)
    assert PARK[name] < 256
    return L(f"v_accvgpr_write_b32 a{PARK[name]}, v{v}")
def unpark(name, v): return L(f"v_accvgpr_read_b32 v{v}, a{PARK[name]}")
def wda(ks): return 96 + 8*ks if ks < 16 else 8*(ks - 16)

sL, sXC = 41, 40
TKT = YS
A(f"s_cmp_ge_u32 s{sB}, 256\ns_cbranch_scc1 L_end")
stamp("start")
if PROF: A(f"s_memrealtime s[{sRT}:{sRT+1}]")
A(f"s_load_dwordx2 s[42:43], s[0:1], 88")
for sr, off in [(K_, 8), (V_, 16), (SH_, 24), (X_, 0)]:
    A(f"s_load_dwordx2 s[{sr}:{sr+1}], s[0:1], {off}")
A(f"s_load_dwordx4 s[{sWG}:{sWG+3}], s[0:1], 56")
for sr, off in [(WS_, 96), (SSM_, 32), (sEX, 40), (WD_, 72), (OUT_, 80)]:
    A(f"s_load_dwordx2 s[{sr}:{sr+1}], s[0:1], {off}")
A(f"s_getpc_b64 s[36:37]\nv_lshrrev_b32 v62, 5, v0\nv_lshlrev_b32 v62, 7, v62")
if CODEPF:
    A(f"""s_lshr_b32 s6, s{sB}, 3
s_lshl_b32 s6, s6, 10
v_add_u32 v2, s6, v62
v_min_u32 v2, CODE_LAST, v2
global_load_dword v63, v2, s[36:37]""")
A(f"""v_lshrrev_b32 v1, 6, v0
v_and_b32 v{vL}, 63, v0
v_readfirstlane_b32 s{sW}, v1
s_getreg_b32 s{sXC}, hwreg(HW_REG_XCC_ID)
s_and_b32 s{sXC}, s{sXC}, 7""")
def srd_consts(lst):
    return sum([L(f"s_mov_b32 s{sr+2}, {size}\ns_mov_b32 s{sr+3}, 0x20000") for sr, size in lst], [])
S.extend(srd_consts([(K_, 2097152), (V_, 2097152), (SH_, 4096), (X_, 2097152), (W_, 1835008)]))
A(f"""s_lshr_b32 s{sTT}, s{sB}, 3
s_and_b32 s{sDT}, s{sB}, 7
v_lshrrev_b32 v{vA8}, 3, v{vL}
v_and_b32 v{vC8}, 7, v{vL}
v_lshlrev_b32 v{vL16}, 4, v{vL}
v_and_b32 v{vFa}, 31, v{vL}
v_lshlrev_b32 v{vFa}, 7, v{vFa}
s_add_u32 s{sT2}, s{sW}, 1
v_xor_b32 v{vKa}, s{sT2}, v{vC8}
v_lshlrev_b32 v{vKa}, 4, v{vKa}
v_lshl_add_u32 v{vKa}, v{vA8}, 10, v{vKa}
v_xor_b32 v{vKb}, 64, v{vKa}
s_lshl_b32 s{sK0}, s{sTT}, 16
s_lshl_b32 s{sK1}, s{sDT}, 7
s_add_u32 s{sK0}, s{sK0}, s{sK1}
s_sub_u32 s{sK1}, s{sK0}, 8192
v_lshlrev_b32 v{t3}, 4, v{vC8}
v_lshl_add_u32 v{t3}, v{vA8}, 10, v{t3}
v_add_u32 v{vKh}, s{sK1}, v{t3}
s_lshl_b32 s{sK1}, s{sW}, 13
s_add_u32 s{sK0}, s{sK0}, s{sK1}
s_add_u32 s{sK1}, s{sK0}, 32768
v_lshlrev_b32 v{vSh}, 4, v{vA8}
s_lshl_b32 s{sK2}, s{sDT}, 9
s_lshl_b32 s{sT1}, s{sW}, 7
s_add_u32 s{sK2}, s{sK2}, s{sT1}
s_lshl_b32 s{sK3}, s{sT2}, 10
s_add_u32 s{sK3}, s{sK3}, {KS_K}
s_lshl_b32 s{sWM1}, s{sB}, 1
s_lshr_b32 s{sT0}, s{sW}, 1
s_add_u32 s{sWM1}, s{sWM1}, s{sT0}
s_mul_i32 s{sWM1}, s{sWM1}, {28*128}
s_lshl_b32 s{sWM2}, s{sB}, 2
s_add_u32 s{sWM2}, s{sWM2}, s{sW}
s_lshl_b32 s{sT0}, s{sWM2}, 11
s_mul_i32 s{sWM2}, s{sWM2}, {14*128}
v_and_b32 v{t0}, {15*128}, v{vFa}
v_min_u32 v{t1}, {27*128}, v{vFa}
s_lshl_b32 s{sT2}, s{sXC}, 5
s_mov_b32 s{sL}, 1""")
S.append(WaitTag(lgkm0=True))
stamp("p")
VAT = opt("vat", 1)
def ticket():
    if not VAT: return f"s_mov_b32 s{sL}, 1\ns_atomic_add s{sL}, s[42:43], s{sT2} glc"
    return f"""v_mov_b32 v58, s{sT2}
v_mov_b32 v59, 1
s_mov_b64 exec, 1
global_atomic_add v57, v58, v59, s[42:43] sc0 sc1
s_mov_b64 exec, -1"""
A(f"s_cmp_lg_u32 s{sW}, 0\ns_cbranch_scc1 L_notk")
S.append(State('save', 'tk'))
A(ticket())
S.append(State('restore', 'tk')) if VAT else None
A(f"""L_notk:
s_bitcmp1_b32 s{sW}, 0
s_cselect_b32 s{W_}, s{sWU}, s{sWG}
s_cselect_b32 s{W_+1}, s{sWU+1}, s{sWG+1}""")
PRE0 = []
if opt("warmx", 1): PRE0 += L(f"buffer_load_dword v60, v{t0}, {srd(X_)}, s{sT0} offen")
if WARMW: PRE0 += L(f"buffer_load_dword v61, v{t1}, {srd(W_)}, s{sWM1} offen")
def kv_loads():
    o = [L(f"""s_lshl_b32 s{sT1}, s{sW}, 4
s_mov_b64 vcc, 0xffff
s_lshl_b64 vcc, vcc, s{sT1}
s_mov_b32 m0, {KS_K}
s_mov_b64 exec, vcc
buffer_load_dwordx4 v{vKh}, {srd(K_)}, 0 offen{NTK} lds
s_mov_b64 exec, -1""", tag="kv")]
    o += groups(L(f"""s_mov_b32 m0, s{sK3}
buffer_load_dwordx4 v{vKa}, {srd(K_)}, s{sK0} offen{NTK} lds
s_add_u32 m0, s{sK3}, 4096
buffer_load_dwordx4 v{vKb}, {srd(K_)}, s{sK1} offen{NTK} lds
s_add_u32 m0, s{sK3}, 8192
buffer_load_dwordx4 v{vKa}, {srd(V_)}, s{sK0} offen{NTK} lds
s_add_u32 m0, s{sK3}, 12288
buffer_load_dwordx4 v{vKb}, {srd(V_)}, s{sK1} offen{NTK} lds
buffer_load_dwordx4 {vr(vSK)}, v{vSh}, {srd(SH_)}, s{sK2} offen""", tag="kv"))
    return o
def flat(gs): return sum(gs, [])
if KVPOS == 0: PRE0 += flat(kv_loads())
S.extend(PRE0)
A(f"""s_add_u32 s0, s{WS_}, {WS_EP}
s_addc_u32 s1, s{WS_+1}, 0
s_load_dword s{sTAG}, s[0:1], 0
s_lshl_b32 s{sT1}, s{sB}, 2
s_add_u32 s{sEX}, s{sEX}, s{sT1}
s_addc_u32 s{sEX+1}, s{sEX+1}, 0
s_load_dword s{sD}, s[{sEX}:{sEX+1}], 0""")
stamp("p")
S.extend(park("xo", t3))
S.extend(srd_consts([(SSM_, 2097152), (WD_, 1835008), (OUT_, 2097152), (WS_, WS_SIZE)]))
A(f"""s_mov_b32 s{sHI}, 0xffff0000
v_lshlrev_b32 v{vZ}, 24, v{vL}
s_mul_i32 s{sR}, s{sW}, {RP}
s_lshl_b32 s{sXS}, s{sW}, 13
s_add_u32 s{sXS}, s{sXS}, {XS}
v_lshrrev_b32 v{t0}, 4, v{vL}
v_xor_b32 v{t1}, v{t0}, v{vC8}
v_lshlrev_b32 v{t1}, 4, v{t1}
v_lshl_add_u32 v{vXg[0]}, v{vA8}, 10, v{t1}
v_xor_b32 v{vXg[1]}, 64, v{vXg[0]}
v_add_u32 v{vXg[2]}, {7168*2}, v{vXg[0]}
v_add_u32 v{vXg[3]}, {7168*3}, v{vXg[1]}
v_add_u32 v{vXg[1]}, 7168, v{vXg[1]}
v_and_b32 v{t1}, 15, v{vL}
v_lshlrev_b32 v{t2}, 1, v{t0}
v_xor_b32 v{t1}, v{t1}, v{t2}
v_lshlrev_b32 v{t1}, 4, v{t1}
v_mul_u32_u24 v{t0}, 3584, v{t0}
v_add_u32 v{vWo[0]}, v{t0}, v{t1}""")
for n in range(1, 8): A(f"v_add_u32 v{vWo[n]}, {4*n*3584 - 1024*(n & 3)}, v{vWo[0]}")
A(f"""v_lshrrev_b32 v{t1}, 5, v{vL}
v_bfe_u32 v{t2}, v{vL}, 1, 3
v_xor_b32 v{t1}, v{t1}, v{t2}
v_lshlrev_b32 v{t1}, 4, v{t1}
v_add_u32 v{t0}, s{sXS}, v{vFa}""")
for ks in range(4):
    A(f"v_xor_b32 v{t2}, {32*ks}, v{t1}\nv_add_u32 v{vXr[ks]}, v{t0}, v{t2}")
A(f"""v_bfe_u32 v{t0}, v{vL}, 4, 1
v_mul_u32_u24 v{t0}, {RP}, v{t0}
v_lshrrev_b32 v{t1}, 5, v{vL}
v_bfe_u32 v{t2}, v{vL}, 2, 2
v_lshl_add_u32 v{t1}, v{t1}, 3, v{t2}
v_lshl_add_u32 v{t0}, v{t1}, 8, v{t0}
v_and_b32 v{t1}, 3, v{vL}
v_lshl_add_u32 v{t0}, v{t1}, 3, v{t0}
v_lshlrev_b32 v{t2}, 5, v{t2}""")
for tl in range(4):
    A(f"v_xor_b32 v{t1}, {32*tl}, v{t2}\nv_add_u32 v{vT[tl]}, v{t0}, v{t1}\nv_add_u32 v{vT[4+tl]}, {2*RP}, v{vT[tl]}")
A(f"""s_lshr_b32 s{sT2}, s{sW}, 1
s_mul_i32 s{sT2}, s{sT2}, {4*HP - 4096}
s_lshl_b32 s{sT1}, s{sW}, 11
s_add_u32 s{sT2}, s{sT2}, s{sT1}
s_add_u32 s{sH3}, s{sT2}, {HT + 384}
s_lshl_b32 s{sK4}, s{sB}, 13
s_add_u32 s{sK4}, s{sK4}, s{sT1}
s_lshl_b32 s{sT1}, s{sDT}, 18
s_lshl_b32 s{sT2}, s{sW}, 16
s_add_u32 s{sT1}, s{sT1}, s{sT2}
s_lshl_b32 s{sT2}, s{sTT}, 7
s_sub_u32 s{sKVS}, s{sT1}, s{sT2}
s_add_u32 s{sKVS}, s{sKVS}, {WS_KV + 2*1984}
s_lshr_b32 s{sKVF}, s{sT1}, 4
s_add_u32 s{sKVF}, s{sKVF}, s{sT2}
s_add_u32 s{sKVF}, s{sKVF}, {WS_KF}
s_lshl_b32 s{sPK}, s{sTT}, 12
s_add_u32 s{sPK}, s{sPK}, {WS_KF}""")
ST2 = []
def B(t): ST2.extend(L(t))
B(f"""v_sub_u32 v{t0}, 7, v{vC8}
v_lshrrev_b32 v{t1}, 5, v{vL}
s_lshl_b32 s{sT1}, s{sW}, 1
v_add_u32 v{t1}, s{sT1}, v{t1}
v_and_b32 v{t2}, 3, v{vA8}
v_lshlrev_b32 v{t2}, 2, v{t2}
v_lshl_add_u32 v{t2}, v{t0}, 10, v{t2}
v_xor_b32 v{t3}, v{t1}, v{t0}
v_lshl_add_u32 v{vKhh}, v{t3}, 4, v{t2}
v_add_u32 v{vKhh}, {KS_K + 640}, v{vKhh}
v_add_u32 v{t3}, 1, v{t0}
v_and_b32 v{t3}, 7, v{t3}
v_xor_b32 v{t3}, v{t1}, v{t3}
v_lshl_add_u32 v{vKm}, v{t3}, 4, v{t2}
v_add_u32 v{vKm}, {KS_K + 1024}, v{vKm}
v_add_u32 v{vKv}, 8192, v{vKm}
v_add_u32 v{vHa}, s{sH3}, v{vL16}
v_lshlrev_b32 v{vKs}, 4, v{vC8}
v_lshl_add_u32 v{t0}, v{vA8}, 12, v{vKs}""")
ST2.extend(park("yo", t0))
B(f"""v_lshl_add_u32 v{vKs}, v{vA8}, 13, v{vKs}
v_bfe_u32 v{t0}, v{vL}, 4, 1
v_lshlrev_b32 v{t0}, 2, v{t0}
v_xor_b32 v{t0}, v{vC8}, v{t0}
v_lshlrev_b32 v{t0}, 4, v{t0}
v_lshl_add_u32 v{vWd}, v{vA8}, 10, v{t0}
v_add_u32 v{vWd+1}, 7168, v{vWd}
v_and_b32 v{t0}, 31, v{vL}
v_min_u32 v{t0}, 23, v{t0}
v_lshrrev_b32 v{t1}, 5, v{vL}
v_mul_u32_u24 v{t1}, {HP}, v{t1}
v_lshl_add_u32 v{t0}, v{t0}, 4, v{t1}
s_mul_i32 s{sT1}, s{sW}, {2*HP}
s_add_u32 s{sT1}, s{sT1}, {HT}
v_add_u32 v{t0}, s{sT1}, v{t0}""")
ST2.extend(park("tz", t0))
B(f"""s_sub_u32 s{sT1}, s{sK4}, 8
v_add_u32 v{t0}, s{sT1}, v{vL16}
s_and_b32 s{sT1}, s{sW}, 1
v_or_b32 v{t1}, s{sT1}, v{vL}
v_cmp_eq_u32 vcc, 0, v{t1}
v_cndmask_b32 v{t0}, v{t0}, -1, vcc""")
ST2.extend(park("sh", t0))
B(f"""s_lshr_b32 s{sT0}, s{sW}, 1
s_mul_i32 s{sT0}, s{sT0}, {2*UP}
s_add_u32 s{sT0}, s{sT0}, {UA}
s_and_b32 s{sT1}, s{sW}, 1
s_lshl_b32 s{sT2}, s{sT1}, 11
s_add_u32 s{sT2}, s{sT2}, s{sT0}
v_add_u32 v{vUw}, s{sT2}, v{vL16}
s_mul_i32 s{sT2}, s{sT1}, {UP - 8}
s_add_u32 s{sT2}, s{sT2}, s{sT0}
s_add_u32 s{sT2}, s{sT2}, 4096
v_min_u32 v{vUz}, 14, v{vL}
v_lshlrev_b32 v{vUz}, 3, v{vUz}
v_add_u32 v{vUz}, s{sT2}, v{vUz}
v_and_b32 v{t0}, 1, v{vL}
v_xor_b32 v{t0}, 1, v{t0}
v_mul_u32_u24 v{t0}, {UP}, v{t0}
v_bfe_u32 v{t1}, v{vL}, 1, 3
v_sub_u32 v{t1}, 7, v{t1}
v_lshrrev_b32 v{t2}, 4, v{vL}
v_add_u32 v{t1}, v{t1}, v{t2}
v_lshl_add_u32 v{t0}, v{t1}, 4, v{t0}
s_xor_b32 s{sT2}, s{sT1}, 1
s_lshl_b32 s{sT2}, s{sT2}, 8
s_add_u32 s{sT2}, s{sT2}, s{sT0}
v_add_u32 v{t0}, s{sT2}, v{t0}""")
ST2.extend(park("cb", t0))
B(f"""v_sub_u32 v{t0}, 63, v{vL}
v_lshlrev_b32 v{t0}, 3, v{t0}
s_xor_b32 s{sT2}, s{sT1}, 1
s_lshl_b32 s{sT2}, s{sT2}, 11
s_add_u32 s{sT2}, s{sT2}, s{sT0}
v_add_u32 v{t0}, s{sT2}, v{t0}""")
ST2.extend(park("cu", t0))
B(f"""v_and_b32 v{t0}, 3, v{vL}
v_mul_u32_u24 v{t0}, {HP}, v{t0}
v_bfe_u32 v{t1}, v{vL}, 2, 2
v_lshl_add_u32 v{t0}, v{t1}, 7, v{t0}
v_lshl_add_u32 v{t0}, v{t2}, 4, v{t0}
s_lshr_b32 s{sT0}, s{sW}, 1
s_mul_i32 s{sT0}, s{sT0}, {4*HP}
s_xor_b32 s{sT2}, s{sT1}, 1
s_lshl_b32 s{sT2}, s{sT2}, 8
s_add_u32 s{sT0}, s{sT0}, s{sT2}
s_add_u32 s{sT0}, s{sT0}, {HT}
v_add_u32 v{t0}, s{sT0}, v{t0}""")
ST2.extend(park("ca", t0))
B(f"""v_lshrrev_b32 v{t0}, 5, v{vL}
v_bfe_u32 v{t1}, v{vL}, 2, 2
v_lshl_add_u32 v{t0}, v{t0}, 2, v{t1}
v_lshlrev_b32 v{t0}, 7, v{t0}
v_bfe_u32 v{t1}, v{vL}, 3, 1
v_lshl_add_u32 v{t0}, v{t1}, 6, v{t0}
v_bfe_u32 v{t1}, v{vL}, 4, 1
v_lshl_add_u32 v{t0}, v{t1}, 5, v{t0}
v_and_b32 v{t1}, 3, v{vL}
v_lshl_add_u32 v{t0}, v{t1}, 3, v{t0}
s_mul_i32 s{sDS}, s{sW}, {DSP}
s_add_u32 s{sDS}, s{sDS}, {DS}
v_add_u32 v{vDr[0]}, s{sDS}, v{t0}
v_add_u32 v{t1}, s{sR}, v{t0}""")
ST2.extend(park("td0", t1))
B(f"v_xor_b32 v{t0}, 64, v{t0}\nv_add_u32 v{vDr[1]}, s{sDS}, v{t0}\nv_add_u32 v{t1}, s{sR}, v{t0}")
ST2.extend(park("td1", t1))
B(f"""v_bfe_u32 v{t0}, v{vL}, 2, 1
v_and_b32 v{t1}, 3, v{vL}
v_lshl_add_u32 v{t0}, v{t0}, 4, v{t1}
v_lshlrev_b32 v{t0}, 7, v{t0}""")
ST2.extend(park("fh", t0))
PP = 272; YP = 144; Y2P = 144
B(f"""v_and_b32 v{t0}, 31, v{vL}
v_mul_u32_u24 v{t0}, {PP}, v{t0}
v_lshrrev_b32 v{t1}, 5, v{vL}
v_lshl_add_u32 v{t0}, v{t1}, 4, v{t0}
v_add_u32 v{t0}, s{sR}, v{t0}""")
ST2.extend(park("pw", t0))
B(f"""s_lshl_b32 s{sT1}, s{sW}, 3
v_add_u32 v{t2}, s{sT1}, v{vA8}
v_mul_u32_u24 v{t0}, {PP}, v{t2}
v_lshl_add_u32 v{t0}, v{vC8}, 5, v{t0}""")
ST2.extend(park("pr", t0))
B(f"""v_mul_u32_u24 v{t0}, {Y2P}, v{t2}
v_lshl_add_u32 v{t0}, v{vC8}, 4, v{t0}
v_add_u32 v{t0}, {YS}, v{t0}""")
ST2.extend(park("y2r", t0))
B(f"""v_mul_u32_u24 v{t0}, {YP}, v{vA8}
v_lshl_add_u32 v{t0}, v{vC8}, 4, v{t0}
s_add_u32 s{sT1}, s{sR}, 17408
v_add_u32 v{t0}, s{sT1}, v{t0}""")
ST2.extend(park("y1w", t0))
B(f"""v_bfe_u32 v{t0}, v{vL}, 2, 2
v_mul_u32_u24 v{t0}, {YP}, v{t0}
v_and_b32 v{t1}, 3, v{vL}
v_lshl_add_u32 v{t0}, v{t1}, 3, v{t0}
v_lshrrev_b32 v{t1}, 4, v{vL}
v_lshl_add_u32 v{t0}, v{t1}, 5, v{t0}
v_add_u32 v{t0}, s{sT1}, v{t0}""")
ST2.extend(park("y1r", t0))
B(f"""v_mul_u32_u24 v{t0}, {Y2P}, v{vL}
s_lshl_b32 s{sT1}, s{sW}, 5
s_add_u32 s{sT1}, s{sT1}, {YS}
v_add_u32 v{t0}, s{sT1}, v{t0}""")
ST2.extend(park("y2w", t0))
if opt("st2early", 1): S.extend(ST2)
stamp("p")
S.append(WaitTag(lgkm0=True))
A(f"""v_mov_b32 v{t1}, {TKT}
s_cmp_lg_u32 s{sW}, 0
s_cbranch_scc1 L_tkw
s_mov_b32 s{sCNT}, 8""")
if VAT: S.append(Ins(f"s_waitcnt_raw vmcnt({len([i for i in PRE0 if i.kind == 'vmem'])})"))
A("L_tkl:")
if VAT: A(f"v_readfirstlane_b32 s{sL}, v57")
S.append(State('save', 'tk2'))
A(f"""s_cmp_lt_u32 s{sL}, 32
s_cbranch_scc1 L_tkd
s_sub_u32 s{sCNT}, s{sCNT}, 1
s_cbranch_scc1 L_tkf
s_add_u32 s{sXC}, s{sXC}, 1
s_and_b32 s{sXC}, s{sXC}, 7
s_lshl_b32 s{sT2}, s{sXC}, 5
{ticket()}
s_waitcnt vmcnt(0) lgkmcnt(0)
s_branch L_tkl""")
S.append(State('restore', 'tk2'))
A(f"""L_tkf:
s_lshr_b32 s{sL}, s{sB}, 3
s_and_b32 s{sXC}, s{sB}, 7
L_tkd:
s_lshl_b32 s{sL}, s{sL}, 3
s_add_u32 s{sL}, s{sL}, s{sXC}
v_mov_b32 v{t0}, s{sL}
ds_write_b32 v{t1}, v{t0}
s_waitcnt lgkmcnt(0)
L_tkw:
s_barrier
ds_read_b32 v{t0}, v{t1}
v_readfirstlane_b32 s{sL}, v{t0}
s_and_b32 s{sL}, s{sL}, 255""")
if opt("x_static", 0): A(f"s_mov_b32 s{sL}, s{sB}")
stamp("p")
A(f"""s_and_b32 s{sT1}, s{sL}, 3
s_lshl_b32 s{sRB}, s{sT1}, 2
s_bfe_u32 s{sT0}, s{sL}, 0x20003
s_add_u32 s{sRB}, s{sRB}, s{sT0}
s_lshr_b32 s{sROT}, s{sL}, 5
s_bfe_u32 s{sT2}, s{sL}, 0x10002
s_mul_i32 s{sFS}, s{sT2}, 7
s_add_u32 s{sFS}, s{sFS}, s{sROT}
s_mul_i32 s{sT0}, s{sT0}, {ROTW}
s_add_u32 s{sROT}, s{sROT}, s{sT0}
s_lshl_b32 s{sTT}, s{sT1}, 1
s_add_u32 s{sTT}, s{sTT}, s{sT2}
s_lshl_b32 s{sTT}, s{sTT}, 2
s_lshr_b32 s{sT0}, s{sL}, 6
s_add_u32 s{sTT}, s{sTT}, s{sT0}
s_lshl_b32 s{sXB}, s{sRB}, 17
s_lshl_b32 s{sT1}, s{sW}, 15
s_add_u32 s{sXB}, s{sXB}, s{sT1}
s_lshr_b32 s{sT1}, s{sW}, 1
s_mul_i32 s{sT2}, s{sT1}, {32*3584}
s_lshl_b32 s{sT1}, s{sFS}, 8
s_add_u32 s{sT2}, s{sT2}, s{sT1}""")
def ws_calc(s): return L(f"""s_add_u32 s{sWS[s]}, s{sROT}, {s}
s_and_b32 s{sWS[s]}, s{sWS[s]}, 7
s_mul_i32 s{sWS[s]}, s{sWS[s]}, {64*3584}
s_add_u32 s{sWS[s]}, s{sWS[s]}, s{sT2}""")
def x_dma(bt):
    o = L(f"""s_add_u32 s{sT0}, s{sROT}, {bt}
s_and_b32 s{sT0}, s{sT0}, 7
s_lshl_b32 s{sT0}, s{sT0}, 7
s_add_u32 m0, s{sXS}, {(bt & 1) * 4096}
s_add_u32 s{sT0}, s{sT0}, s{sXB}""")
    for rg in range(4):
        o += L(f"buffer_load_dwordx4 v{vXg[rg]}, {srd(X_)}, s{sT0} offen offset:{1024*rg}{NTX} lds", tag=f"x{bt}")
    return o
def sig(s): return (s + 1) % 3
def w_dma(s):
    o = []
    for n in range(8):
        if n % 4 == 0: o += L(f"s_add_u32 m0, s{sR}, {sig(s)*8192 + 1024*n}")
        o += L(f"buffer_load_dwordx4 v{vWo[n]}, {srd(W_)}, s{sWS[s]} offen offset:{1024*(n&3)}{NTW} lds", tag=f"w{s}")
    return o
CP2 = []
if CODEPF:
    CP2 = L(f"""s_lshr_b32 s{sT1}, s{sL}, 3
s_lshl_b32 s{sT1}, s{sT1}, 10
v_add_u32 v62, s{sT1}, v62
v_min_u32 v62, CODE_LAST, v62
global_load_dword v63, v62, s[36:37]""")
S.extend(CP2)
A(f"s_cmp_ge_u32 s{sL}, 224\ns_cbranch_scc1 L_skip0")
S.extend(x_dma(0) + ws_calc(0) + w_dma(0))
A(f"""s_branch L_skip1
L_skip0:
s_bitcmp1_b32 s{sL}, 3
s_cselect_b32 s{W_}, s{sWU}, s{sWG}
s_cselect_b32 s{W_+1}, s{sWU+1}, s{sWG+1}
s_and_b32 s{sT1}, s{sRB}, 3
s_add_u32 s{sXB}, s{sTT}, s{sT1}
s_sub_u32 s{sXB}, s{sXB}, 3
s_lshl_b32 s{sXB}, s{sXB}, 2
s_add_u32 s{sXB}, s{sXB}, s{sW}
s_lshl_b32 s{sT0}, s{sXB}, 14
s_add_u32 s{sT1}, s{sT0}, 8192""")
S.extend(unpark("xo", t1))
S.append(State('save', 'sk'))
AEARLY = []
for rg in range(2):
    for cc in range(8):
        AEARLY += L(f"buffer_load_dwordx4 {vr(64 + 32*rg + 4*cc)}, v{t1}, {srd(X_)}, s{sT0 if rg == 0 else sT1} offen offset:{128*cc}")
S.extend(AEARLY)
S.append(State('restore', 'sk'))
A("L_skip1:")
for s in range(1, 8): S.extend(ws_calc(s))
if not opt("st2early", 1): S.extend(ST2)
if opt("leak", -1) >= 100:
    if opt("leakx", 0):
        A(f"s_sub_u32 s{sRT}, s{sL}, s{sB}\ns_and_b32 s{sRT}, s{sRT}, 7\ns_mul_i32 s{sRT}, s{sRT}, 100")
    A(f"""v_mov_b32 v{t0}, s{sRT}
s_lshl_b32 s{sT1}, s{sB}, 2
s_add_u32 s{sT1}, s{sT1}, {WS_PR}
buffer_store_dword v{t0}, v{vZ}, {srd(WS_)}, s{sT1} offen sc1""")
A(f"""s_bfe_u32 s{sDT}, s{sL}, 0x30003
s_lshl_b32 s{sO0}, s{sTT}, 16
s_lshl_b32 s{sT1}, s{sW}, 13
s_add_u32 s{sO0}, s{sO0}, s{sT1}
s_lshr_b32 s{sSTR}, s{sO0}, 6
s_add_u32 s{sSTR}, s{sSTR}, {WS_ST}
s_lshl_b32 s{sT1}, s{sDT}, 7
s_add_u32 s{sO0}, s{sO0}, s{sT1}
s_mul_i32 s{sWDO}, s{sW}, {448*1024}
s_add_u32 s{sWDO}, s{sWDO}, s{sT1}
s_lshr_b32 s{sPY}, s{sTT}, 4
s_lshl_b32 s{sPY}, s{sPY}, 16
s_lshl_b32 s{sT0}, s{sDT}, 13
s_add_u32 s{sPY}, s{sPY}, s{sT0}
s_lshl_b32 s{sT0}, s{sW}, 11
s_add_u32 s{sPY}, s{sPY}, s{sT0}
s_add_u32 s{sPY}, s{sPY}, {WS_YF}
s_lshl_b32 s{sT0}, s{sRB}, 3
s_lshl_b32 s{sT1}, s{sW}, 1
s_add_u32 s{sT0}, s{sT0}, s{sT1}
s_lshl_b32 s{sT0}, s{sT0}, 7
s_lshl_b32 s{sT1}, s{sFS}, 8
s_add_u32 s{sT1}, s{sT1}, 0x4000
v_mov_b32 v{t0}, s{sT0}
v_mov_b32 v{t1}, s{sT1}
v_and_b32 v{t2}, 2, v{vL}
v_cmp_eq_u32 vcc, 0, v{t2}
v_cndmask_b32 v{t0}, v{t1}, v{t0}, vcc
v_and_b32 v{t2}, 1, v{vL}
v_lshl_add_u32 v{t0}, v{t2}, 7, v{t0}
v_add_u32 v{t0}, {WS_SF}, v{t0}""")
S.extend(park("f2", t0))
A(f"""s_lshl_b32 s{sT0}, s{sTT}, 9
s_add_u32 s{sT0}, s{sT0}, {WS_SF}
v_and_b32 v{t2}, 3, v{vL}
v_lshlrev_b32 v{t2}, 7, v{t2}
v_add_u32 v{t2}, s{sT0}, v{t2}""")
S.extend(park("fs", t2))
A(f"""s_lshl_b32 s{sPH}, s{sTT}, 12
s_mul_i32 s{sT0}, s{sW}, 7
s_lshr_b32 s{sT0}, s{sT0}, 1
s_lshl_b32 s{sT0}, s{sT0}, 7
s_add_u32 s{sPH}, s{sPH}, s{sT0}
s_add_u32 s{sPH}, s{sPH}, {WS_HF}
s_lshl_b32 s{sT0}, s{sRB}, 2
s_add_u32 s{sT0}, s{sT0}, s{sW}
s_mul_i32 s{sHB}, s{sT0}, {112*1024}
s_lshl_b32 s{sT2}, s{sFS}, 13
s_add_u32 s{sHB}, s{sHB}, s{sT2}
s_lshl_b32 s{sHF}, s{sT0}, 4
s_add_u32 s{sHF}, s{sHF}, s{sFS}
s_lshl_b32 s{sHF}, s{sHF}, 7
s_add_u32 s{sHF}, s{sHF}, {WS_HF}
s_mul_i32 s{sHO}, s{sTT}, {224*1024}
s_mul_i32 s{sT1}, s{sW}, {28*1024}
s_add_u32 s{sHO}, s{sHO}, s{sT1}
s_add_u32 s{sTAG}, s{sTAG}, 1
s_add_u32 s{sYB}, s{sK4}, {WS_Y}
s_and_b32 s{sYF}, s{sW}, 1
s_lshl_b32 s{sYF}, s{sYF}, 9
s_lshl_b32 s{sT1}, s{sB}, 1
s_add_u32 s{sYF}, s{sYF}, s{sT1}
s_lshr_b32 s{sT1}, s{sW}, 1
s_add_u32 s{sYF}, s{sYF}, s{sT1}
s_lshl_b32 s{sYF}, s{sYF}, 7
s_add_u32 s{sYF}, s{sYF}, {WS_YF}
v_mov_b32 v{vTg}, s{sTAG}
s_lshl_b32 s{sT1}, s{sD}, 16
s_and_b32 s{sT2}, s{sD}, s{sHI}
s_bitcmp1_b32 s{sW}, 1
s_cselect_b32 s{sD}, s{sT2}, s{sT1}
s_lshl_b32 s{sT1}, s{sW}, 16
s_lshl_b32 s{sYT}, s{sDT}, 18
s_add_u32 s{sYT}, s{sYT}, s{sT1}
s_lshl_b32 s{sT1}, s{sTT}, 7
s_add_u32 s{sYT}, s{sYT}, s{sT1}
s_add_u32 s{sYT}, s{sYT}, {WS_Y}""")
stamp("p")

KR = 64; VRW = 80; kf = 88; wf = 110
OP = [KR + 2*i for i in range(8)]
def kv_reads():
    o = L(f"ds_read2_b32 {pr(KR)}, v{vKhh} offset0:0 offset1:32\nds_read_b32 v{KR+2}, v{vKhh} offset:256")
    o += sum([L(f"ds_read2_b32 {pr(KR+4+2*i)}, v{vKm} offset0:{64*i} offset1:{64*i+32}") for i in range(4)], [])
    o += sum([L(f"ds_read2_b32 {pr(VRW+2*i)}, v{vKv} offset0:{64*i} offset1:{64*i+32}") for i in range(4)], [])
    return o
def kv_compute():
    wk = []
    for c in range(2):
        for h in range(2):
            wk += L(f"v_lshlrev_b32 v{wf+4*h+c}, 16, v{vSK+2*c+h}\nv_and_b32 v{wf+4*h+2+c}, s{sHI}, v{vSK+2*c+h}")
    ksrc = [KR, KR+1, KR+2] + list(range(KR+4, KR+12))
    for i in range(11):
        wk += L(f"v_lshlrev_b32 v{kf+2*i}, 16, v{ksrc[i]}\nv_and_b32 v{kf+2*i+1}, s{sHI}, v{ksrc[i]}")
    for i in range(8):
        for c in range(2): wk += L(f"v_mul_f32 v{OP[i]+c}, v{kf+2*(i+3)+c}, v{wf+c}")
    for tap in range(1, 4):
        for i in range(8):
            for c in range(2): wk += L(f"v_fmac_f32 v{OP[i]+c}, v{kf+2*(i+3-tap)+c}, v{wf+2*tap+c}")
    for i in range(8):
        wk += L(f"v_lshlrev_b32 v{kf+2*i}, 16, v{VRW+i}\nv_and_b32 v{kf+2*i+1}, s{sHI}, v{VRW+i}")
    for i in range(8):
        for c in range(2): wk += L(f"v_mul_f32 v{OP[i]+c}, v{OP[i]+c}, v{kf+2*i+c}")
    for c in range(2):
        for m in range(4):
            wk += L(f"v_cvt_pk_bf16_f32 v{vKo+4*c+m}, v{OP[7-2*m]+c}, v{OP[6-2*m]+c}")
    return wk
def kv_stores():
    return [L(f"buffer_store_dwordx4 {vr(vKo)}, v{vKs}, {srd(WS_)}, s{sKVS} offen sc1", tag="kvst"),
            L(f"s_add_u32 s{sKVS}, s{sKVS}, 4096") + L(f"buffer_store_dwordx4 {vr(vKo+4)}, v{vKs}, {srd(WS_)}, s{sKVS} offen sc1", tag="kvst")]
hd = [120, 54]
def ssm_loads():
    o = [L(f"buffer_load_dwordx4 {vr(hd[n]+2)}, v{vL16}, {srd(SSM_)}, s{sK4} offen offset:{1024*n}{NTK}") for n in range(2)]
    o.append(unpark("sh", t2) + L(f"buffer_load_dwordx2 {pr(hd[0])}, v{t2}, {srd(SSM_)}, 0 offen"))
    o.append(L(f"buffer_load_dwordx2 {pr(hd[1])}, v{vL16}, {srd(SSM_)}, s{sK4} offen offset:1016"))
    return o
TZ = 60
def tab_zero():
    return unpark("tz", t0) + L("\n".join(f"v_mov_b32 v{TZ+i}, 0" for i in range(4))) + L(f"ds_write_b128 v{t0}, {vr(TZ)}")
def tab_build():
    o_ = []
    for n in range(2):
        e0, e1, d0, d1, d2, d3 = range(hd[n], hd[n] + 6)
        o = 64 + 12 * n
        blk = [L(f"""v_alignbit_b32 v{o}, v{e1}, v{e0}, 16
v_alignbit_b32 v{o+1}, v{d0}, v{e1}, 16
v_alignbit_b32 v{o+2}, v{d1}, v{d0}, 16
v_alignbit_b32 v{o+3}, v{d2}, v{d1}, 16"""), L(f"""v_mov_b32 v{o+4}, v{e1}
v_mov_b32 v{o+5}, v{d0}
v_mov_b32 v{o+6}, v{d1}
v_mov_b32 v{o+7}, v{d2}"""), L(f"""v_alignbit_b32 v{o+8}, v{d0}, v{e1}, 16
v_alignbit_b32 v{o+9}, v{d1}, v{d0}, 16
v_alignbit_b32 v{o+10}, v{d2}, v{d1}, 16
v_alignbit_b32 v{o+11}, v{d3}, v{d2}, 16""")]
        o_ += L(f"ds_write_b128 v{vHa}, {vr(d0)} offset:{3*HP + 1024*n}")
        for s in range(3):
            o_ += blk[s] + L(f"ds_write_b128 v{vHa}, {vr(o+4*s)} offset:{s*HP + 1024*n}")
    return o_
def u_loads():
    return [L(f"s_add_u32 s{sK4}, s{sK4}, {WS_KV}\nbuffer_load_dwordx4 {vr(vKo)}, v{vL16}, {srd(WS_)}, s{sK4} offen sc1"),
            L(f"buffer_load_dwordx4 {vr(vKo+4)}, v{vL16}, {srd(WS_)}, s{sK4} offen offset:1024 sc1")]
def u_writes():
    o = L(f"ds_write_b64 v{vUz}, {pr(TZ)}")
    for n in range(2):
        o += L(f"""ds_write_b128 v{vUw}, {vr(vKo+4*n)} offset:{1024*n}
ds_write_b64 v{vUw}, v[{vKo+4*n}:{vKo+1+4*n}] offset:{1024*n + UP - 8}
ds_write_b64 v{vUw}, v[{vKo+2+4*n}:{vKo+3+4*n}] offset:{1024*n + UP}""")
    return o
def wd_adv(step, wrap):
    o = L(f"s_add_u32 s{sWDO}, s{sWDO}, {step}")
    if wrap and ROT2: o += L(f"s_cmp_eq_u32 s{sWDO}, s{sWDE}\ns_cselect_b32 s{sWDO}, s{sWDS}, s{sWDO}")
    return o
def wd_dma(nks, ldsoff, tag, ks0):
    o = []
    for k in range(nks):
        o += L(f"s_add_u32 m0, s{sR}, {ldsoff + 2048*k}")
        for n in range(2):
            o += L(f"buffer_load_dwordx4 v{vWd + n}, {srd(WD_)}, s{sWDO} offen offset:{1024*n}{NTD} lds", tag=tag)
        o += wd_adv(16*1024, (ks0 + k) % 2 == 1)
    return o
def wdc_dma(c):
    o = []
    for k in range(3):
        o += L(f"s_add_u32 m0, s{sDS}, {2048*k}")
        for n in range(2):
            o += L(f"buffer_load_dwordx4 v{vWd + n}, {srd(WD_)}, s{sWDO} offen offset:{1024*n}{NTD} lds", tag=f"wdc{c}")
        o += wd_adv(16*1024, (3*c + k) % 2 == 1)
    return o
def wd_reads(ks0, nks, ldsoff, base):
    o = []
    for k in range(nks):
        for dt in range(2):
            b = wda(ks0 + k) + 4*dt
            off = ldsoff + 2048*k
            o += L(f"ds_read_b64_tr_b16 a[{b}:{b+1}], v{base[dt]} offset:{off}\nds_read_b64_tr_b16 a[{b+2}:{b+3}], v{base[dt]} offset:{off+1024}")
    return o
def rnd(r): return f"v_cvt_pk_bf16_f32 v{r}, v{r}, v{r}\nv_lshlrev_b32 v{r}, 16, v{r}"

A(f"s_cmp_ge_u32 s{sL}, 224\ns_cbranch_scc1 L_apath")
NS0 = nstamp
def x_read(bt):
    return [WaitTag(vm=f"x{bt}")] + sum([L(f"ds_read_b128 {ar(XA+16*bt+4*ks)}, v{vXr[ks]} offset:{(bt&1)*4096}") for ks in range(4)], [])
NB = opt('nb', 14)
NM = 264
order = []
for s in range(7):
    for ks in range(4):
        for ti in range(8): order.append((s, ks, ti))
for ti in range(8):
    for ks in range(4): order.append((7, ks, ti))
CSA = 100
BSEQ = {2: 108, 0: 110, 3: 114, 1: 116}
main = []; gap_of = {}
seen = set()
for i, (s, ks, ti) in enumerate(order):
    kk = 4*s + ks
    c = "0" if ti not in seen else acc(ti)
    seen.add(ti)
    gap_of[i] = len(main)
    main.append(Ins(f"v_mfma_f32_32x32x16_bf16 {acc(ti)}, {ar(4*(i % NB))}, {ar(XA+4*kk)}, {c}"))
    if s == 7 and ks == 3:
        main.append(Ins(f"v_mfma_f32_32x32x16_bf16 {acc(ti)}, {vr(CSA + 4*(ti>>2))}, {vr(BSEQ[ti & 3])}, {acc(ti)}"))
assert len(main) == NM
def frag_reads(i):
    s, ks, ti = order[i]
    b = 4 * (i % NB)
    off = sig(s)*8192 + 16*(ks & 1)*256 + 128*(ti >> 2)
    rg = vT[4*(ks >> 1) + (ti & 3)]
    return L(f"ds_read_b64_tr_b16 a[{b}:{b+1}], v{rg} offset:{off}\nds_read_b64_tr_b16 a[{b+2}:{b+3}], v{rg} offset:{off+1024}")
SC = Sched(NM)
pre = []
LA = opt('la', 7)
def put(g, items):
    if g < 0: pre.extend(items)
    else: SC.pin(g, items)
def bar(s): return 32*s - LA - 1 if s < 8 else NM - 10
KVB = opt("kvb", 2 if KVPOS else 1)
SSB = 6
for s in range(9):
    g0 = bar(s)
    tags = ([f"w{s}"] if s < 8 else []) + (["kv"] if s == KVB else [])
    if s == 0: put(-1, x_read(0))
    put(g0, [WaitTag(vm=tags, lgkm0=True)] + L("s_barrier") + stampL("g"))
    if s == 0:
        for n in range(LA + 1): put(-1, frag_reads(n))
        for n in range(LA + 1, 32): put(((n - LA - 1) * (28 - LA)) // (31 - LA), frag_reads(n))
    elif s < 7:
        for n in range(32): put(g0 + (n * 28) // 32, frag_reads(32*s + n))
    elif s == 7:
        for n in range(32): put(max(g0 + (n * 28) // 32, gap_of[224 + n - NB] + 1), frag_reads(224 + n))
WG_ = opt("wgrp", 2)
waits = {}
for i in range(1, 256, WG_):
    waits[gap_of[i] - 1] = WaitRegs([ar(4*(j % NB)) for j in range(i, min(i + WG_, 256)) if j // 32 == i // 32])
vq = []; vrel = []; vdead = []
def vone(items, rel, dead=None): vq.append(items); vrel.append(rel); vdead.append(rel if dead is None else dead)
def vstream(items, rel, dead):
    for grp in groups(items): vone(grp, rel, dead)
def vgroups(gs, rel, dead):
    for grp in gs: vone(grp, rel, dead)
def xnext(bt, rel, dead):
    vstream([WaitRegs([ar(XA+16*(bt-2), 16)])] + x_dma(bt), rel, dead)
pre1 = x_dma(1) + w_dma(1)
lq = []; lrel = []; ldead = []
def ladd(items, rel, dead, step=0):
    for n, it in enumerate(items): lq.append([it]); lrel.append(min(dead, rel + step*n)); ldead.append(dead)

seq = []
def sq(rel, dead, gs): seq.append((rel, dead, gs))
def d_touch(i):
    return [L(f"s_add_u32 s{sWDE}, s{sWDS}, {i*112*1024}\nbuffer_load_dword v{vWd+3}, v{vWd+2}, {srd(WD_)}, s{sWDE} offen")] if (DPF and not ROT2) else []
if opt("late1", 0):
    for n, grp in enumerate(groups(w_dma(1)) + groups(x_dma(1))): sq(0, n // 2, [grp])
    pre1 = []
sq(0, 12, groups([WaitRegs([ar(XA, 16)])] + x_dma(2)))
sq(0, 18 if KVPOS else 23, groups(w_dma(2)))
if KVPOS: sq(0, 23, kv_loads())
sq(bar(1) + 1, bar(1) + 1, [x_read(1)])
sq(bar(1) + 4, bar(1) + 10, groups([WaitRegs([ar(XA+16, 16)])] + x_dma(3)))
sq(bar(1) + 1, bar(1) + 22, groups(w_dma(3)))
sq(bar(1) + 20, bar(1) + 24, [x_read(2)])
sq(bar(1) + 24, bar(2), groups([WaitRegs([ar(XA+32, 16)])] + x_dma(4)))
sq(bar(2) + 1, bar(2) + 16, groups(w_dma(4)))
sq(bar(2) + 14, bar(2) + 18, [x_read(3)])
sq(bar(2) + 18, bar(2) + 26, groups([WaitRegs([ar(XA+48, 16)])] + x_dma(5)))
GKS = bar(KVB + 1) + opt("gks", 27)
def kvs_():
    sq(GKS, GKS + 2, kv_stores())
    if WARMD: sq(GKS, GKS + 4, [L(f"v_min_u32 v{t2}, {13*128}, v{vFa}\nbuffer_load_dword v{t1}, v{t2}, {srd(WD_)}, s{sWM2} offen")])
    sq(GKS, GKS + 4, d_touch(0))
if KVB == 1: kvs_()
sq(bar(3) + 4, bar(3) + 8, [x_read(4)])
sq(bar(3) + 1, bar(3) + 16, groups([WaitRegs([ar(XA+64, 16)])] + x_dma(6)))
sq(bar(3) + 1, bar(3) + 26, groups(w_dma(5)))
if KVB == 2: kvs_()
sq(bar(3) + 1, bar(3) + 31, d_touch(1))
sq(bar(4) + 1, bar(4) + 3, [x_read(5)])
KVPUB = opt("kvpub", bar(4) + 4 if KVB == 1 else bar(5))
if KVB == 1: sq(KVPUB, KVPUB, [[WaitTag(vm="kvst")] + flag_store(sKVF)])
sq(bar(4) + 1, bar(4) + 12, groups([WaitRegs([ar(XA+80, 16)])] + x_dma(7)))
sq(bar(4) + 1, bar(4) + 24, groups(w_dma(6)))
sq(bar(4) + 1, bar(4) + 28, ssm_loads())
sq(bar(4) + 28, bar(4) + 30, [x_read(6)])
sq(bar(4) + 28, bar(4) + 31, d_touch(2))
if KVB == 2: sq(KVPUB, KVPUB, [[WaitTag(vm="kvst")] + flag_store(sKVF)])
sq(bar(5) + 1, bar(5) + 16, groups(w_dma(7)))
sq(bar(5) + 22, bar(5) + 24, [x_read(7)])
sq(bar(5) + 22, bar(5) + 25, d_touch(3))
sq(bar(5) + 20, bar(6), groups(wdc_dma(0)))
sq(bar(6) + 1, bar(6) + 1, [unpark("f2", vFa2) + poll_issue(vF2, vFa2, "0")])
KPI = opt("kpi", bar(6) + 2)
sq(KPI, KPI, [poll_issue(vFl, vFa, f"s{sPK}")])
sq(bar(6) + 1, bar(6) + 20, groups(wd_dma(4, 0, "wd0a", 3)))
SPC = opt("spc", bar(6) + 22)
put(bar(6), stampL("k"))
sq(SPC, SPC + 2, [stampL("k") + poll_check(vF2, vFa2, "0") + stampL("k") + L(f"""s_lshl_b32 s{sT1}, s{sFS}, 10
s_add_u32 s{sT1}, s{sT1}, {WS_CS}
v_lshrrev_b32 v{t2}, 2, v{vFa}
buffer_load_dwordx4 {vr(CSA)}, v{t2}, {srd(WS_)}, s{sT1} offen sc1"""),
  L(f"buffer_load_dwordx4 {vr(CSA+4)}, v{t2}, {srd(WS_)}, s{sT1} offen offset:16 sc1"),
  L(f"""s_lshr_b32 s{sT1}, s{sXB}, 6
s_add_u32 s{sT1}, s{sT1}, {WS_ST + 8}
v_lshrrev_b32 v{t2}, 5, v{vL}
v_lshl_add_u32 v{t2}, v{t2}, 24, v{vL16}
buffer_load_dword v110, v{t2}, {srd(WS_)}, s{sT1} offen sc1""")])
KPC = opt("kpc", SPC + 3)
ul = u_loads()
sq(KPC, KPC + 1, [stampL("k") + poll_check(vFl, vFa, f"s{sPK}") + stampL("k") + ul[0], ul[1]])
put(bar(7), stampL("k")); put(gap_of[227] - 3, stampL("k")); put(gap_of[227] + 2, stampL("k")); put(bar(8) - 16, stampL("k")); put(bar(8), stampL("k"))
sq(bar(7) + 1, bar(8) - 8, groups(wd_dma(4, 8192, "wd0b", 7)))
for rel, dead, gs in seq:
    for grp in gs: vone(grp, rel, dead)
ladd(kv_reads(), bar(KVB) + 1, bar(KVB) + 6)
ladd(kv_compute(), bar(KVB) + 5, GKS - 1)
tbl = tab_zero() + tab_build()
ladd(tbl[:22], bar(6) + 4, bar(7) - 8, 1)
ladd([WaitTag(vm="wdc0")] + wd_reads(0, 3, 0, vDr), bar(7) - 7, bar(7) - 3)
ladd(L("\n".join(f"v_mov_b32 v{r}, 0" for r in [108, 109, 111, 112, 113, 114, 115, 116, 118, 119])), bar(7) + 1, gap_of[227] - 3)
ladd(L("v_mov_b32 v117, v110"), gap_of[227] - 2, gap_of[227] - 2)
ladd(tbl[22:], gap_of[227], bar(8) - 14, 1)
ladd(u_writes(), bar(8) - 15, bar(8) - 2, 2)
XD = opt("x_drop", "").split(",")
def keep(it):
    return not (isinstance(it, Ins) and it.kind == 'vmem' and it.tag and any(it.tag.startswith(p) for p in XD if p))
vq = [[it for it in g_ if keep(it)] for g_ in vq]
SC.flex(vq, vrel, vdead, pace=opt("pace", 2))
SC.flex(lq, lrel, ldead)
def epi1(ti, pk=False):
    o = []
    b = ACC + 16*ti
    for r in range(8): o += L(f"v_max_f32 v{b+r}, 0, v{b+r}")
    if pk:
        for r in range(0, 8, 2): o += L(f"v_pk_mul_f32 {pr(b+r)}, {pr(b+r)}, {pr(b+8+r)}")
    else:
        for r in range(8): o += L(f"v_mul_f32 v{b+r}, v{b+r}, v{b+8+r}")
    for m in range(4): o += L(f"v_cvt_pk_bf16_f32 v{b+8+m}, v{b+2*m}, v{b+2*m+1}")
    so = sHB if ti < 4 else sT2
    o += L(f"buffer_store_dwordx4 {vr(b+8)}, v{vL16}, {srd(WS_)}, s{so} offen offset:{1024*(ti&3)} sc1", tag="hst")
    return o
for g, wv in waits.items(): SC.pin(g, [wv])
fill, bud = SC.solve(lo=5.9, hi=6.01)
print("gemm1 budget", bud, file=sys.stderr)
for g, wv in waits.items():
    fill[g].remove(wv); fill[g].append(wv)
def cnt(f, g): return len([x for x in f[g] if not (isinstance(x, Ins) and x.kind == 'label')])
tail = []
g = 0
for ti in range(8):
    g = max(g, 224 + 5*ti + 4 + 2)
    ops = epi1(ti, pk=(g >= NM))
    for op in ops:
        while g < NM and cnt(fill, g) >= opt("ebud", 7): g += 1
        if g < NM: fill[g].append(op)
        else: tail.append(op)
S.append(State('save', 'split'))
A(f"s_add_u32 s{sT2}, s{sHB}, 4096")
S.append(WaitTag(vm="x0"))
S.extend(pre1)
S.extend(pre)
stamp(); stamp("a"); stamp("a"); stamp("a"); stamp("a")
S.extend(weave(main, fill))
stamp(); stamp("g")

vCa, vCb, vCu = 1, 2, 3
vTd = [4, 5]
vY8, vXc = 6, 7
FB = [64, 128]
CQ = [8, 12, 16, 20, 48, 52, 56, 60]
def creads(z):
    r_ = []
    b = FB[z & 1]
    for r in range(8):
        r_ += L(f"ds_read_b128 {vr(b+4*r)}, v{vCa} offset:{192 + 512*r - 64*z}")
        r_ += L(f"ds_read_b128 {vr(b+32+4*r)}, v{vCb} offset:{3776 - 512*r - 64*z}")
    return r_
def conv_entry():
    return unpark("ca", vCa) + unpark("cb", vCb) + unpark("cu", vCu) + unpark("td0", vTd[0]) + unpark("td1", vTd[1]) + unpark("fh", vFa) + creads(0)
S.extend(conv_entry())
S.extend(tail)
NS1 = nstamp

AP = []
def AA(t, tag=None): AP.extend(L(t, tag))
AA("L_apath:")
sTA, sFA = sXB, sXS
AA(f"""s_lshr_b32 s{sFA}, s{sRB}, 1
s_min_u32 s{sFA}, s{sFA}, 6
s_add_u32 s{sFA}, s{sFA}, s{sFS}
s_sub_u32 s{sFA}, s{sFA}, 7
s_mov_b32 s{sHF}, {WS_EP + 0x800}
v_lshrrev_b32 v2, 4, v{vL}
v_mul_u32_u24 v2, 3584, v2
v_and_b32 v3, 15, v{vL}
v_lshl_add_u32 v2, v3, 4, v2
s_mul_i32 s{sT0}, s{sW}, {128*3584}
s_lshl_b32 s{sT1}, s{sFA}, 8
s_add_u32 s{sT0}, s{sT0}, s{sT1}""")
AP.insert(1, State('setvm', PRE0 + CP2 + AEARLY))
if KVPOS: AP[2:2] = flat(kv_loads())
if PROF and "a" in SEL: AP.extend(stampI(1))
def cs_load(n): return L(f"buffer_load_dwordx4 {vr(128 + 4*n)}, v2, {srd(W_)}, s{sT0} offen\ns_add_u32 s{sT0}, s{sT0}, {4*3584}")
AA(f"s_mov_b32 s{sT1}, 0x3f803f80")
for rg in range(2):
    for r in range(32):
        x = 64 + 32*rg + r
        a1 = 4 + 4*rg + (r & 1); a2 = a1 + 2
        if r % 8 == 0: AP.extend(cs_load(4*rg + r // 8))
        AA(f"v_dot2_f32_bf16 v{a1}, v{x}, s{sT1}, {'0' if r < 2 else 'v%d' % a1}\nv_dot2_f32_bf16 v{a2}, v{x}, v{x}, {'0' if r < 2 else 'v%d' % a2}")
AP.append(WaitTag(vm="kv"))
AA("s_barrier")
AP.extend(kv_reads())
for a in (4, 6, 8, 10): AA(f"v_add_f32 v{a}, v{a}, v{a+1}")
for mod in ("quad_perm:[1,0,3,2]", "quad_perm:[2,3,0,1]", "row_half_mirror"):
    for a in (4, 6, 8, 10): AA(f"v_add_f32_dpp v{a}, v{a}, v{a} {mod} row_mask:0xf bank_mask:0xf")
for rg in range(2):
    m, v_, o = 4 + 4*rg, 6 + 4*rg, 12 + 4*rg
    AA(f"""v_mul_f32 v{m}, 0xbb000000, v{m}
v_mul_f32 v{v_}, 0x3b000000, v{v_}
v_fma_f32 v{v_}, -v{m}, v{m}, v{v_}
v_max_f32 v{v_}, 0, v{v_}
{rnd(v_)}
v_cvt_pk_bf16_f32 v{o+2}, v{m}, v{m}
v_lshlrev_b32 v{m}, 16, v{o+2}
v_add_f32 v{v_}, 0x3727c5ac, v{v_}
{rnd(v_)}
v_sqrt_f32 v{v_}, v{v_}
{rnd(v_)}
v_rcp_f32 v{o}, v{v_}
v_mul_f32 v{o+1}, v{m}, v{o}
v_mul_f32 v{o+3}, v{o}, v{o}""")
AA(f"""v_and_b32 v3, 7, v{vL}
v_lshlrev_b32 v3, 24, v3
v_lshl_add_u32 v3, v{vL}, 1, v3
s_lshl_b32 s{sT1}, s{sTA}, 8
s_add_u32 s{sT1}, s{sT1}, {WS_ST}
buffer_store_dwordx4 v[12:15], v3, {srd(WS_)}, s{sT1} offen sc1
buffer_store_dwordx4 v[16:19], v3, {srd(WS_)}, s{sT1} offen offset:128 sc1""", tag="stst")
kc = kv_compute()
for n, it in enumerate(kc):
    if n % 12 == 0 and 8 + n // 12 < 20: AP.extend(cs_load(8 + n // 12))
    AP.append(it)
AP.extend(flat(kv_stores()))
AP.append(WaitTag(vm="stst"))
AA(f"s_lshl_b32 s{sTA}, s{sTA}, 7\ns_add_u32 s{sTA}, s{sTA}, {WS_SF}")
AP.extend(flag_store(sTA))
if PROF and "a" in SEL: AP.extend(stampI(2))
AA(f"s_mov_b32 s{sT1}, 0x3f80\ns_mov_b32 s{sT2}, 0x3f800000")
for n in range(32):
    if n < 12: AP.extend(cs_load(20 + n))
    for r in range(4):
        x = 128 + 4*n + r
        AA(f"v_dot2_f32_bf16 v{100+2*r}, v{x}, s{sT1}, {'0' if n == 0 else 'v%d' % (100+2*r)}\nv_dot2_f32_bf16 v{101+2*r}, v{x}, s{sT2}, {'0' if n == 0 else 'v%d' % (101+2*r)}")
    if n == 20:
        AP.append(WaitTag(vm="kvst"))
        AP.extend(flag_store(sKVF))
AA(f"""s_lshl_b32 s{sT1}, s{sW}, 11
v_lshl_add_u32 v2, v{vL}, 5, s{sT1}
ds_write_b128 v2, v[100:103]
ds_write_b128 v2, v[104:107] offset:16""")
AP.extend(flat(ssm_loads()))
AP.append(WaitTag(lgkm0=True))
AA("s_barrier")
AA(f"""s_and_b32 s{sT1}, s{sW}, 1
s_lshl_b32 s{sT1}, s{sT1}, 6
v_add_u32 v2, s{sT1}, v{vL}
v_lshlrev_b32 v3, 2, v2""")
for n in range(16): AA(f"ds_read_b32 v{128+n}, v3 offset:{512*n}")
for st in (8, 4, 2, 1):
    for n in range(st): AA(f"v_add_f32 v{128+n}, v{128+n}, v{128+st+n}")
AA(f"""v_cvt_pk_bf16_f32 v129, v128, v128
v_lshlrev_b32 v129, 16, v129
v_sub_f32 v129, v128, v129
v_cvt_pk_bf16_f32 v128, v128, v129
v_and_b32 v3, 15, v2
v_lshlrev_b32 v3, 5, v3
v_lshrrev_b32 v2, 4, v2
v_lshl_add_u32 v3, v2, 2, v3
s_lshr_b32 s{sT1}, s{sW}, 1
s_lshl_b32 s{sT1}, s{sT1}, 24
v_add_u32 v3, s{sT1}, v3
s_and_b32 s{sT0}, s{sRB}, 1
s_lshl_b32 s{sT1}, s{sFA}, 1
s_add_u32 s{sT0}, s{sT0}, s{sT1}
s_lshl_b32 s{sT1}, s{sT0}, 9
s_add_u32 s{sT1}, s{sT1}, {WS_CS}
buffer_store_dword v128, v3, {srd(WS_)}, s{sT1} offen sc1
s_lshl_b32 s{sT0}, s{sT0}, 7
s_add_u32 s{sT0}, s{sT0}, {WS_SF + 0x4000}""")
AP.append(WaitTag(vm0=True, lgkm0=True))
AA("s_barrier")
AP.extend(flag_store(sT0))
if PROF and "a" in SEL: AP.extend(stampI(3))
AP.extend(wdc_dma(0) + wd_dma(4, 0, "wd0a", 3) + wd_dma(4, 8192, "wd0b", 7))
AP.extend(poll_issue(vFl, vFa, f"s{sPK}"))
AP.extend(tab_zero() + tab_build())
AP.extend([WaitTag(vm="wdc0")] + wd_reads(0, 3, 0, vDr) + [WaitTag(lgkm0=True)])
AA("s_barrier")
AP.extend(poll_check(vFl, vFa, f"s{sPK}") + flat(u_loads()) + u_writes())
AP.append(WaitTag(vm0=True, lgkm0=True))
AA("s_barrier")
AP.extend(conv_entry())
for n in range(NS0 + (3 if "a" in SEL else 0), NS1): AP.extend(stampI(n))
AP.append(WaitTag(lgkm0=True))
AA("s_branch L_conv")

A("L_conv:")
stamp(); stamp("c")
HRING = list(range(192, 256, 4)) + list(range(64, 128, 4)) + [48, 52, 56, 60]
NH = len(HRING)
NHE = 16
AC2 = 128
def h_load(n):
    tt, ks = n // 28, n % 28
    if not ROT2:
        o = L(f"buffer_load_dwordx4 {vr(HRING[n % NH])}, v{vL16}, {srd(WS_)}, s{sHO} offen offset:{1024*(ks%4)} sc1")
        if ks % 4 == 3: o += L(f"s_add_u32 s{sHO}, s{sHO}, {4096 if n != 27 else 4096 + 84*1024}")
        if HPF and n % HPG == HPG - 1 and n + 1 + HPD < 56: o += h_touch((n + 1 + HPD) // HPG)
        return o
    o = L(f"buffer_load_dwordx4 {vr(HRING[n % NH])}, v{vL16}, {srd(WS_)}, s{sHO} offen offset:{1024*(ks%2)} sc1")
    if ks % 2 == 1:
        o += L(f"""s_add_u32 s{sHO}, s{sHO}, 2048
s_cmp_eq_u32 s{sHO}, s{sHE}
s_cselect_b32 s{sHO}, s{sHS}, s{sHO}""")
    if n == 27: o += L(f"s_add_u32 s{sHO}, s{sHO}, {112*1024}\ns_add_u32 s{sHS}, s{sHS}, {112*1024}\ns_add_u32 s{sHE}, s{sHE}, {112*1024}")
    return o
HPG = 7
HPD = opt("hpd", 7)
vHt, vHd = 28, 29
def h_touch(gi):
    off = (gi // 4) * 112 * 1024 + (gi % 4) * 7 * 1024
    return L(f"s_add_u32 s{sHE}, s{sHS}, {off}\nbuffer_load_dword v{vHd}, v{vHt}, {srd(WS_)}, s{sHE} offen sc1")
mm = []
pairs = sorted([(r, q - r, q) for q in range(8) for r in range(q + 1)], key=lambda x: (max(x[0], x[1]), x[2]))
C2 = Sched(144)
seenq = set()
for z in range(4):
    b = FB[z & 1]
    for r, p, q in pairs:
        c = vr(CQ[q]) if q in seenq else "0"
        seenq.add(q)
        mm.append(Ins(f"v_mfma_f32_16x16x32_bf16 {vr(CQ[q])}, {vr(b+4*r)}, {vr(b+32+4*p)}, {c}"))
    if z < 3:
        for n, it in enumerate(creads(z + 1)): C2.pin(36*z + 1 + 2*n, [it])
cq = []; crel = []
def cadd(items, rel, dma=False, step=0):
    for n, grp in enumerate(groups(items) if dma else [[x] for x in items]): cq.append(grp); crel.append(rel + step*n)
HPUB = opt("hpub", 16)
HPI = opt("hpi", 110)
HPC = opt("hpc", 136)
def wregs(k0, n): return [ar(wda(k), 8) for k in range(k0, k0 + n)]
cadd([WaitTag(vm="wd0a")] + wd_reads(3, 4, 0, vTd), 0)
cadd(wd_dma(4, 16384, "wd0c", 11), 0, True)
cadd([WaitTag(vm="wd0b")] + wd_reads(7, 4, 8192, vTd), 0)
C2.pin(HPUB, stampL("c") + [WaitTag(vm="hst")] + flag_store(sHF) + stampL("c"))
cadd([WaitRegs(wregs(3, 4))] + wd_dma(4, 0, "wd1a", 15), 0, True)
cadd([WaitRegs(wregs(7, 4))] + wd_dma(4, 8192, "wd1b", 19), 0, True)
cadd([WaitTag(vm="wd0c")] + wd_reads(11, 4, 16384, vTd), 0)
cadd([WaitRegs(wregs(11, 4))] + wd_dma(4, 16384, "wd1c", 23), 0, True)
cadd([WaitTag(vm="wd1a")] + wd_reads(15, 1, 0, vTd), 0)
cadd([WaitRegs(wregs(15, 1))] + wd_dma(1, 0, "wd2", 27), 0, True)
cq.append(poll_issue(vFl, vFa, f"s{sPH}")); crel.append(HPI)
cq.append(stampL("c") + poll_check(vFl, vFa, f"s{sPH}") + stampL("c")); crel.append(HPC)
if HPF and not ROT2:
    cq.insert(len(cq) - 1, unpark("ht", vHt)); crel.insert(len(crel) - 1, 0)
    for gi in range(1 + HPD // HPG): cq.append(h_touch(gi)); crel.append(HPC)
NHC = opt("nhc", 4)
for n in range(NHC): cq.append(h_load(n)); crel.append(HPC + 2*n)
C2.flex(cq, [min(r, 143) for r in crel], 143)
f2, bud = C2.solve(lo=1.0, hi=4.0, free=1.5)
print("conv budget", bud, file=sys.stderr)
S.extend(weave(mm, f2))
stamp(); stamp("c")

mm = []
for tt in range(2):
    for ks in range(28):
        n = 28*tt + ks
        for dt in range(2):
            a = vr(AC2 + 32*tt + 16*dt, 16)
            c = "0" if ks == 0 else a
            mm.append(Ins(f"v_mfma_f32_32x32x16_bf16 {a}, {ar(wda(ks)+4*dt)}, {vr(HRING[n % NH])}, {c}"))
for n in range(NHC, NHE): S.extend(h_load(n))
A(f"""s_lshl_b32 s{sT1}, s{sW}, 12
s_add_u32 s{sT1}, s{sT1}, {XCH}
v_add_u32 v{vXc}, s{sT1}, v{vL16}
v_lshlrev_b32 v{vY8}, 3, v{vL}""")
for n in range(4): A(f"ds_read_b64 {pr(40+2*n)}, v{vCu} offset:{4088 - 504 - 2048 - 512*n}")
S.append(WaitTag(lgkm0=True))
A("s_barrier")
A(f"s_bitcmp1_b32 s{sW}, 0\ns_cbranch_scc1 L_xB")
S.append(State('save', 'x'))
for n in range(4): A(f"ds_write_b128 v{vXc}, {vr(CQ[4+n])} offset:{1024*n}")
A("s_branch L_xE\nL_xB:")
S.append(State('save', 'xA'))
S.append(State('restore', 'x'))
for n in range(4): A(f"ds_write_b128 v{vXc}, {vr(CQ[n])} offset:{1024*n}")
for n in range(16): A(f"v_mov_b32 v{8+n}, v{48+n}")
A("L_xE:")
S.append(State('restore', 'xA'))
A(f"v_xor_b32 v{vXc}, 0x1000, v{vXc}")
cf = []
for n in range(4):
    a = 8 + 4*n; t = 40 + 2*n
    cf += L(f"""v_and_b32 v24, s{sHI}, v{t+1}
v_lshlrev_b32 v25, 16, v{t+1}
v_and_b32 v26, s{sHI}, v{t}
v_lshlrev_b32 v27, 16, v{t}""")
    for r in range(4): cf += L(f"v_fma_f32 v{a+r}, s{sD}, v{24+r}, v{a+r}")
cf2 = []
for n in range(4):
    a = 8 + 4*n; t = 40 + 2*n
    for r in range(4): cf2 += L(f"v_add_f32 v{a+r}, v{a+r}, v{48+4*n+r}")
    cf2 += L(f"v_cvt_pk_bf16_f32 v{t}, v{a}, v{a+1}\nv_cvt_pk_bf16_f32 v{t+1}, v{a+2}, v{a+3}")
    cf2 += L(f"buffer_store_dwordx2 {pr(t)}, v{vY8}, {srd(WS_)}, s{sYB} offen offset:{512*n} sc1", tag="yst")
S.extend(cf)
S.append(WaitTag(lgkm0=True))
A("s_barrier")
for n in range(4): A(f"ds_read_b128 {vr(48+4*n)}, v{vXc} offset:{1024*n}")
S.extend(cf2)
stamp("c")
G2 = Sched(112)
hq = []; hrel = []
for n in range(NHE, 56):
    hq.append(h_load(n))
    hrel.append(max(0, 2*(n - NH) + 2))
G2.flex(hq, hrel, [max(r, (n - NHE)) + 2 for n, r in zip(range(NHE, 56), hrel)], pace=1)
vPW, vPR0, vPR1, vY2, vXo = 8, 9, 10, 11, 12
XT = 16
STT = [24, 36]
gq = []; grel = []; gdead = []
def gadd(items, rel, unit=False, dead=111):
    if unit: gq.append(items); grel.append(rel); gdead.append(dead)
    else:
        for x in items: gq.append([x]); grel.append(rel); gdead.append(dead)
gadd(unpark("fs", 13) + poll_issue(14, 13, "0"), 0)
gadd(unpark("pw", vPW) + unpark("pr", vPR0) + unpark("y2r", vY2) + unpark("xo", vXo) + unpark("yo", 7) + unpark("y1w", 1) + unpark("y1r", 2) + unpark("y2w", 3), 0)
gadd(wd_reads(16, 3, 2048, vTd), 0, dead=26)
gadd([WaitTag(vm="wd1b")] + wd_reads(19, 4, 8192, vTd), 0, dead=32)
gadd([WaitTag(vm="wd1c")] + wd_reads(23, 4, 16384, vTd) + [WaitTag(vm="wd2")] + wd_reads(27, 1, 0, vTd), 0, dead=40)
YPUB = opt("ypub", 24)
gadd([WaitTag(vm="yst")] + flag_store(sYF) + stampL("c"), YPUB, True)
gadd(poll_check(14, 13, "0"), YPUB, True)
gadd(L(f"""v_add_u32 v{vPR1}, {2*RP}, v{vPR0}
s_add_u32 s{sT2}, s{sO0}, 32768
buffer_load_dwordx4 {vr(XT)}, v{vXo}, {srd(X_)}, s{sO0} offen
buffer_load_dwordx4 {vr(XT+4)}, v{vXo}, {srd(X_)}, s{sT2} offen
v_lshrrev_b32 v15, 3, v{vL}
v_lshlrev_b32 v15, 4, v15
buffer_load_dwordx4 {vr(STT[0])}, v15, {srd(WS_)}, s{sSTR} offen sc1
buffer_load_dwordx4 {vr(STT[1])}, v15, {srd(WS_)}, s{sSTR} offen offset:512 sc1
v_and_b32 v{vFa}, 15, v{vL}
v_lshlrev_b32 v{vFa}, 7, v{vFa}"""), YPUB)
def pwrites(tt):
    o = []
    for dt in range(2):
        for m in range(4):
            o += L(f"ds_write_b128 v{vPW}, {vr(AC2 + 32*tt + 16*dt + 4*m)} offset:{32*tt*PP + 128*dt + 32*m}")
    return o
YPI = opt("ypi", 58)
gadd(poll_issue(vFl, vFa, f"s{sPY}"), YPI, True)
for n, it in enumerate(pwrites(0)): gadd([it], 59 + 2*n)
YCK = opt("yck", 78)
gadd(stampL("c") + poll_check(vFl, vFa, f"s{sPY}") + stampL("c") + L(f"buffer_load_dwordx4 v[40:43], v7, {srd(WS_)}, s{sYT} offen sc1"), YCK, True)
gadd(L(f"s_add_u32 s{sYT}, s{sYT}, 32768\nbuffer_load_dwordx4 v[44:47], v7, {srd(WS_)}, s{sYT} offen sc1"), YCK, True)
def fin_pre(p, t):
    o = []
    xs = XT + 4*p; rs = STT[p]
    for m in range(4):
        o += L(f"v_lshlrev_b32 v{t+2*m}, 16, v{xs+m}\nv_and_b32 v{t+2*m+1}, s{sHI}, v{xs+m}")
    for e in range(8): o += L(f"v_fma_f32 v{t+8+e}, v{t+e}, v{rs}, v{rs+1}")
    o += L(f"v_mov_b32 v{rs+2}, v{rs+3}")
    return o
FT = [128, 144]
gadd([WaitTag(lgkm0=True)] + fin_pre(0, FT[0]) + fin_pre(1, FT[1]), YCK)
YW = opt("yw", 100)
gadd(L(f"ds_write_b128 v1, v[40:43]\nds_write_b128 v1, v[44:47] offset:{8*YP}"), YW)
gadd(sum([L(f"ds_read_b64_tr_b16 v[{40+2*j}:{41+2*j}], v2 offset:{4*j*YP}") for j in range(4)], []), YW + 2)
gadd(L(f"ds_write_b128 v3, v[40:43]\nds_write_b128 v3, v[44:47] offset:16"), YW + 6)
G2.flex(gq, grel, gdead)
f3, bud = G2.solve(lo=5.0, hi=6.1, free=6)
print("gemm2 budget", bud, file=sys.stderr)
S.extend(weave(mm, f3))
stamp(); stamp("c")
def fin_reads(p, b):
    o = []
    for w in range(4):
        for hh in range(2):
            o += L(f"ds_read_b128 {vr(b + 8*w + 4*hh)}, v{vPR0 + (w>>1)} offset:{(w&1)*RP + 32*p*PP + 16*hh}")
    return o
def fin_math(p, b, ys, t):
    o = []
    u = 192 + 8*p
    for m in range(4):
        o += L(f"v_lshlrev_b32 v{u+2*m}, 16, v{ys+m}\nv_and_b32 v{u+2*m+1}, s{sHI}, v{ys+m}")
    for e in range(0, 8, 2): o += L(f"v_pk_fma_f32 {pr(t+e)}, {pr(t+8+e)}, {pr(u+e)}, {pr(t+e)}")
    for e in range(0, 8, 2):
        o += L(f"v_pk_add_f32 {pr(b+e)}, {pr(b+e)}, {pr(b+8+e)}")
    for e in range(0, 8, 2):
        o += L(f"v_pk_add_f32 {pr(b+16+e)}, {pr(b+16+e)}, {pr(b+24+e)}")
    for e in range(0, 8, 2): o += L(f"v_pk_add_f32 {pr(b+e)}, {pr(b+e)}, {pr(b+16+e)}")
    for e in range(0, 8, 2): o += L(f"v_pk_fma_f32 {pr(b+e)}, {pr(b+e)}, {pr(STT[p]+2)}, {pr(t+e)}")
    for m in range(4): o += L(f"v_cvt_pk_bf16_f32 v{b+8+m}, v{b+2*m}, v{b+2*m+1}")
    o += L(f"buffer_store_dwordx4 {vr(b+8)}, v{vXo}, {srd(OUT_)}, s{sO0 if p == 0 else sT2} offen {opt('outf', '')}".replace('_', ' ').replace('buffer store dwordx4', 'buffer_store_dwordx4'))
    return o
S.append(WaitTag(lgkm0=True))
A("s_barrier")
S.extend(L(f"ds_read_b128 {vr(112)}, v{vY2} offset:0") + fin_reads(0, 48) + L(f"ds_read_b128 {vr(116)}, v{vY2} offset:{32*Y2P}"))
S.extend(pwrites(1))
S.extend(fin_math(0, 48, 112, FT[0]))
S.append(WaitTag(lgkm0=True))
A("s_barrier")
S.extend(fin_reads(1, 80))
S.extend(fin_math(1, 80, 116, FT[1]))
A(f"""s_or_b32 s{sT1}, s{sB}, s{sW}
s_cmp_lg_u32 s{sT1}, 0
s_cbranch_scc1 L_noep
v_and_b32 v1, 31, v{vL}
v_lshrrev_b32 v2, 5, v{vL}
v_lshlrev_b32 v1, 7, v1
v_lshl_add_u32 v1, v2, 14, v1
s_mov_b32 s4, {WS_KF}
s_mov_b32 s5, {WS_KF + 0x8000}
s_mov_b32 s6, {WS_KF + 0x10000}
s_mov_b32 s7, {WS_KF + 0x18000}
s_mov_b32 s{sCNT}, 0x40000
L_ep:
buffer_load_dword v4, v1, {srd(WS_)}, s4 offen sc1
buffer_load_dword v5, v1, {srd(WS_)}, s5 offen sc1
buffer_load_dword v6, v1, {srd(WS_)}, s6 offen sc1
buffer_load_dword v7, v1, {srd(WS_)}, s7 offen sc1
s_waitcnt vmcnt(0)
v_xor_b32 v4, s{sTAG}, v4
v_xor_b32 v5, s{sTAG}, v5
v_xor_b32 v6, s{sTAG}, v6
v_xor_b32 v7, s{sTAG}, v7
v_or_b32 v4, v4, v5
v_or3_b32 v4, v4, v6, v7
v_cmp_ne_u32 vcc, 0, v4
s_sub_u32 s{sCNT}, s{sCNT}, 1
s_cbranch_scc1 L_epw
s_cbranch_vccnz L_ep
L_epw:
s_mov_b32 s{sT1}, {WS_EP}
buffer_store_dword v{vTg}, v{vZ}, {srd(WS_)}, s{sT1} offen sc1
L_noep:""")
LEAK = opt("leak", -1)
if PROF and LEAK >= 0:
    S.append(WaitTag(vm0=True))
    A("s_memrealtime s[0:1]")
    S.append(WaitTag(lgkm0=True))
    if LEAK >= 200:
        A(f"s_mov_b32 s{sRT}, 0\ns_mov_b32 s{STP[1]}, {(LEAK - 200) * 25}\ns_mov_b32 s{sL}, 0")
        LEAK = 1
    if LEAK >= 100:
        A(f"""s_mov_b32 s5, {WS_PR}
buffer_load_dwordx4 v[4:7], v{vL16}, {srd(WS_)}, s5 offen sc1
s_waitcnt vmcnt(0)
v_min_u32 v8, v4, v5
v_min3_u32 v8, v8, v6, v7
v_max_u32 v9, v4, v5
v_max3_u32 v9, v9, v6, v7
s_mov_b32 s5, 0
s_mov_b32 s6, -1
s_mov_b32 s7, 0
L_red:
s_nop 3
v_readlane_b32 s8, v8, s5
v_readlane_b32 s9, v9, s5
s_nop 3
s_min_u32 s6, s6, s8
s_max_u32 s7, s7, s9
s_add_u32 s5, s5, 1
s_cmp_lt_u32 s5, 64
s_cbranch_scc1 L_red
s_mov_b32 s{sRT}, s6""")
        if LEAK == 100: A(f"s_mov_b32 s{STP[1]}, s7")
        elif LEAK == 101: A(f"s_mov_b32 s{STP[1]}, s0")
        LEAK = 1 if LEAK < 110 else LEAK - 110
    A(f"""s_sub_u32 s4, s{STP[LEAK] if LEAK else 0}, s{sRT}
s_lshl_b32 s4, s4, 2
s_min_u32 s4, s4, 100000
s_cmp_{'lt' if opt('leaka', 0) else 'ge'}_u32 s{sL}, 224
s_cselect_b32 s4, 0, s4
L_leak:
s_memrealtime s[6:7]
s_waitcnt lgkmcnt(0)
s_sub_u32 s6, s6, s0
s_cmp_lt_u32 s6, s4
s_cbranch_scc1 L_leak""")
    PROF = False
if PROF:
    S.append(WaitTag(vm0=True))
    stamp("end")
    A(f"s_memrealtime s[0:1]")
    S.append(WaitTag(lgkm0=True))
    for n in range(13): A(f"v_mov_b32 v{16+n}, " + (f"s{STP[n]}" if n < nstamp else "0"))
    A(f"v_mov_b32 v29, s{sRT}\nv_mov_b32 v30, s0")
    A(f"s_getreg_b32 s{sT1}, hwreg(HW_REG_XCC_ID)\nv_mov_b32 v31, s{sT1}")
    A(f"""s_lshl_b32 s{sT0}, s{sL}, 2
s_add_u32 s{sT0}, s{sT0}, s{sW}
s_lshl_b32 s{sT0}, s{sT0}, 6
s_add_u32 s{sT0}, s{sT0}, {WS_PR}
v_mov_b32 v1, 0
buffer_store_dwordx4 v[16:19], v1, {srd(WS_)}, s{sT0} offen
buffer_store_dwordx4 v[20:23], v1, {srd(WS_)}, s{sT0} offen offset:16
buffer_store_dwordx4 v[24:27], v1, {srd(WS_)}, s{sT0} offen offset:32
buffer_store_dwordx4 v[28:31], v1, {srd(WS_)}, s{sT0} offen offset:48""")
A("L_end:\ns_endpgm")

S.append(State('restore', 'split'))
S.extend(AP)
body = finalize(S, verbose=False)
hdr = open("cdna_kernels/" + NAME + ".s.ref").read().split("; Override launch geometry")[0]
txt = hdr + f"; @launch grid=(256,1,1) block=(256,1,1) lds={LDS_SIZE}\n"
txt += f""".amdgcn_target "amdgcn-amd-amdhsa--gfx950"
.text
.globl {NAME}_kernel
.p2align 8
.type {NAME}_kernel,@function
{NAME}_kernel:
"""
code = ""
for i in body + SLOW:
    code += ("" if i.kind == 'label' else "    ") + i.text + "\n"
    if i.op == "s_getpc_b64": code += "L_pc:\n"
code = code.replace("s_waitcnt_raw", "s_waitcnt")
code = code.replace("CODE_LAST", "L_slow0-L_pc")
txt += code
txt += f""".section .rodata,"a"
.p2align 6
.amdhsa_kernel {NAME}_kernel
  .amdhsa_next_free_vgpr 512
  .amdhsa_next_free_sgpr 102
  .amdhsa_accum_offset 256
  .amdhsa_group_segment_fixed_size 0
  .amdhsa_kernarg_size 104
  .amdhsa_user_sgpr_count 2
  .amdhsa_user_sgpr_kernarg_segment_ptr 1
  .amdhsa_system_sgpr_workgroup_id_x 1
  .amdhsa_float_denorm_mode_32 3
  .amdhsa_float_denorm_mode_16_64 3
.end_amdhsa_kernel
"""
out = [a for a in sys.argv[1:] if not a.startswith("--")]
open(out[0] if out else "cdna_kernels/" + NAME + ".s", "w").write(txt)
print("instrs:", len(body), file=sys.stderr)
```
